```python
import torch

def _softmax(x, axis=-1):
    return torch.softmax(x, dim=axis)
def _gelu(x):
    return torch.nn.functional.gelu(x, approximate="tanh")
def _silu(x):
    return torch.nn.functional.silu(x)
def _sigmoid(x):
    return torch.sigmoid(x)
def _layernorm(x, axis=-1, eps=1e-5):
    m = x.mean(dim=axis, keepdim=True)
    v = x.var(dim=axis, keepdim=True, unbiased=False)
    return (x - m) / torch.sqrt(v + eps)
def _scatter_add(tgt, idx, src, axis=0):
    return tgt.clone().index_add_(axis, idx, src)
def _segment_sum(src, seg, n):
    out = torch.zeros((n,) + src.shape[1:], dtype=src.dtype)
    return out.index_add_(0, seg, src)
def _pad(x, pw):
    flat = tuple(v for pair in reversed(pw) for v in pair)
    return torch.nn.functional.pad(x, flat)

kernel_name = 'recurrent_scan__mha_block_cached__geglu_ffn__decode'

def setup_inputs():

    _w = (lambda a: (lambda t: t.to(torch.bfloat16) if t.is_floating_point() else t)(torch.as_tensor(a)))
    def _A_setup():
        B, Sq, D = 4, 1, 640
        H, Sk, Dh = 32, 8192, 192
        return {
            "x": _w((lambda *s: torch.randn(*s, dtype=torch.bfloat16) * 0.05)(B, Sq, D)),
            "k_cache": _w((lambda *s: torch.randn(*s, dtype=torch.bfloat16) * 1.6)(B, H, Sk, Dh)),
            "v_cache": _w((lambda *s: torch.randn(*s, dtype=torch.bfloat16) * 0.2)(B, H, Sk, Dh)),
            "wq": _w((lambda *s: torch.randn(*s, dtype=torch.bfloat16) * 1.6)(D, H * Dh) * (D ** -0.5)),
            "wo": _w((lambda *s: torch.randn(*s, dtype=torch.bfloat16) * 0.2)(H * Dh, D) * ((H * Dh) ** -0.5)),
        }
    _A_in = _A_setup()

    def _B_setup():
        B, S, D, F = 4, 1, 640, 1536
        return {
            "x": _w((lambda *s: torch.randn(*s, dtype=torch.bfloat16) * 0.05)(B, S, D)),
            "w_gate": _w((lambda *s: torch.randn(*s, dtype=torch.bfloat16) * 0.1)(D, F)),
            "w_up": _w((lambda *s: torch.randn(*s, dtype=torch.bfloat16) * 0.1)(D, F)),
            "w_down": _w((lambda *s: torch.randn(*s, dtype=torch.bfloat16) * 0.1)(F, D)),
        }
    _B_in = _B_setup()

    return {
        "A_x": _A_in["x"],
        "A_k_cache": _A_in["k_cache"],
        "A_v_cache": _A_in["v_cache"],
        "A_wq": _A_in["wq"],
        "A_wo": _A_in["wo"],
        "B_x": _B_in["x"],
        "B_w_gate": _B_in["w_gate"],
        "B_w_up": _B_in["w_up"],
        "B_w_down": _B_in["w_down"],
    }

def reference(A_x, A_k_cache, A_v_cache, A_wq, A_wo, B_x, B_w_gate, B_w_up, B_w_down):
    def _A_ref(x, k_cache, v_cache, wq, wo):
        B, Sq, D = x.shape
        H, Dh = 32, 192
        q = (lambda x, *d: x.permute(*d))((x @ wq).reshape(B, Sq, H, Dh), 0, 2, 1, 3)
        scores = torch.einsum("bhqd,bhkd->bhqk", q, k_cache) * (Dh ** -0.5)
        p = _softmax(scores, axis=-1)
        o = torch.einsum("bhqk,bhkd->bhqd", p, v_cache)
        return (lambda x, *d: x.permute(*d))(o, 0, 2, 1, 3).reshape(B, Sq, H * Dh) @ wo

    def _B_ref(x, w_gate, w_up, w_down):
        return (_gelu(x @ w_gate) * (x @ w_up)) @ w_down

    x = A_x
    xn = _layernorm(x, axis=-1)
    s = _A_ref(xn, A_k_cache, A_v_cache, A_wq, A_wo)
    g = _silu(_B_ref(xn, B_w_gate, B_w_up, B_w_down))
    return x + s * g
```

```python
import re

class Emitter:
    def __init__(self):
        self.lines = []
        self.uid = 0
    def __call__(self, s):
        for l in s.split('\n'):
            l = l.strip()
            if l: self.lines.append(l)
    def label(self, name):
        self.lines.append(name + ':')
    def newlabel(self, base):
        self.uid += 1
        return f'{base}_{self.uid}'
    def comment(self, s):
        self.lines.append('; ' + s)

TRANS = ('v_exp_f32','v_log_f32','v_rcp_f32','v_rsq_f32','v_sqrt_f32','v_sin_f32','v_cos_f32','v_rcp_iflag_f32')

def regs_of(tok):
    tok = tok.strip()
    neg = tok.lstrip('-')
    if neg.startswith('abs(') or neg.startswith('|'):
        neg = neg.replace('abs(','').replace(')','').replace('|','')
    m = re.fullmatch(r'([vsa])(\d+)', neg)
    if m: return [(m.group(1), int(m.group(2)))]
    m = re.fullmatch(r'([vsa])\[(\d+):(\d+)\]', neg)
    if m: return [(m.group(1), i) for i in range(int(m.group(2)), int(m.group(3))+1)]
    if neg in ('vcc',): return [('s',106),('s',107)]
    if neg == 'vcc_lo': return [('s',106)]
    if neg == 'vcc_hi': return [('s',107)]
    if neg == 'm0': return [('m0',0)]
    if neg == 'exec': return [('exec',0)]
    return []

def parse(line):
    if line.endswith(':') or line.startswith(';') or line.startswith('.'):
        return None
    code = line.split(';')[0].strip()
    if not code: return None
    parts = code.split(None, 1)
    mn = parts[0]
    rest = parts[1] if len(parts) > 1 else ''
    ops = []
    cur = ''; depth = 0
    for ch in rest:
        if ch == '[': depth += 1
        if ch == ']': depth -= 1
        if ch == ',' and depth == 0:
            ops.append(cur.strip()); cur = ''
        else: cur += ch
    if cur.strip(): ops.append(cur.strip())
    mods = ''
    if ops:
        sp = ops[-1].split(None, 1)
        if len(sp) > 1:
            ops[-1] = sp[0]; mods = sp[1]
    return mn, ops, mods

def classify(mn, ops, mods):
    d = dict(kind='other', w=[], r=[], dpp=False, trans=False, mfma=False, perm=False, rdlane=False, valu=False,
             vmem=False, ds=False, ldsdma=False, store_wide=False, salu=False, cnd=False, dl=None, srcs=[])
    base = mn
    for suf in ('_e32','_e64','_dpp','_sdwa'):
        if base.endswith(suf): base = base[:-len(suf)]
    allregs = [regs_of(o) for o in ops]
    if mn.startswith('v_mfma'):
        d['mfma'] = True; d['kind'] = 'mfma'
        d['w'] = allregs[0]; d['r'] = allregs[1] + allregs[2]; d['srcc'] = allregs[3]
        d['ab'] = allregs[1] + allregs[2]
        return d
    if mn.startswith('v_'):
        d['valu'] = True; d['kind'] = 'valu'
        d['dpp'] = ('quad_perm' in mods or 'row_' in mods or mn.endswith('_dpp') or 'wave_' in mods)
        d['trans'] = base in TRANS
        d['dl'] = base if base.startswith('v_dot') else None
        if base.startswith('v_permlane'):
            d['perm'] = True
            d['w'] = allregs[0] + allregs[1]; d['r'] = allregs[0] + allregs[1]
        elif base in ('v_readfirstlane_b32','v_readlane_b32'):
            d['rdlane'] = True
            d['w'] = allregs[0]; d['r'] = sum(allregs[1:], [])
        elif base.startswith('v_cmp'):
            d['w'] = allregs[0]; d['r'] = sum(allregs[1:], [])
        elif base in ('v_add_co_u32','v_addc_co_u32','v_sub_co_u32','v_subb_co_u32','v_div_scale_f32'):
            d['w'] = allregs[0] + allregs[1]; d['r'] = sum(allregs[2:], [])
        else:
            d['w'] = allregs[0]; d['r'] = sum(allregs[1:], [])
            d['srcs'] = sum(allregs[1:3], [])
            if base in ('v_fmac_f32','v_dot2c_f32_bf16','v_pk_fmac_f16','v_mac_f32','v_writelane_b32'):
                d['r'] = d['r'] + allregs[0]
            if d['dpp']:
                d['r'] = d['r'] + allregs[0]
            if base == 'v_cndmask_b32':
                d['cnd'] = True
                if len(ops) == 3: d['r'] = d['r'] + [('s',106),('s',107)]
        return d
    if mn.startswith(('buffer_','global_','flat_','scratch_')):
        d['vmem'] = True; d['kind'] = 'vmem'
        isload = '_load' in mn
        isatomic = '_atomic' in mn
        d['ldsdma'] = (' lds' in (' ' + mods)) or ('_lds_' in mn)
        if isload and not d['ldsdma']:
            d['w'] = allregs[0]; d['r'] = sum(allregs[1:], [])
        elif isatomic and 'sc0' in mods:
            d['w'] = allregs[0]; d['r'] = sum(allregs[1:], [])
            if mn.startswith('buffer_'): d['r'] += allregs[0]
        else:
            d['r'] = sum(allregs, [])
        if ('_store_dwordx3' in mn or '_store_dwordx4' in mn):
            d['store_wide'] = True
            d['sdata'] = allregs[0] if mn.startswith('buffer_') else allregs[1]
        return d
    if mn.startswith('ds_'):
        d['ds'] = True; d['kind'] = 'ds'
        if mn.startswith(('ds_read','ds_bpermute','ds_permute','ds_swizzle')) or '_rtn' in mn:
            d['w'] = allregs[0]; d['r'] = sum(allregs[1:], [])
        else:
            d['r'] = sum(allregs, [])
        return d
    if mn.startswith('s_'):
        d['salu'] = True; d['kind'] = 'salu'
        if mn.startswith(('s_cmp','s_cbranch','s_branch','s_waitcnt','s_nop','s_barrier','s_sleep','s_endpgm','s_setprio','s_bitcmp')):
            d['r'] = sum(allregs, [])
        else:
            d['w'] = allregs[0] if allregs else []
            d['r'] = sum(allregs[1:], [])
        return d
    return d

def nop_count(mn, ops):
    if mn == 's_nop': return int(ops[0], 0) + 1
    return 1

def hazard_pass(lines):
    out = []
    hist = []
    def need(cur):
        n = 0
        for dist, p in enumerate(reversed(hist[-24:])):
            if p is None: continue
            pw = set(p['w']);
            req = 0
            cr = set(cur['r']); cw = set(cur['w'])
            if p['valu']:
                vw = {x for x in pw if x[0] == 'v'}
                sw = {x for x in pw if x[0] == 's'}
                if cur['dpp'] and (vw & cr): req = max(req, 2)
                if cur['perm'] and (vw & cr): req = max(req, 2)
                if cur['rdlane'] and (vw & cr): req = max(req, 1)
                if p['trans'] and cur['valu'] and not cur['trans'] and (vw & (cr | cw)): req = max(req, 1)
                if p['trans'] and (cur['mfma'] or cur['vmem'] or cur['ds']) and (vw & cr): req = max(req, 1)
                if cur['valu'] and (sw & cr): req = max(req, 2)
                if cur['vmem'] and (sw & cr): req = max(req, 5)
                if cur['mfma'] and (vw & (cr | set(cur.get('srcc', [])))): req = max(req, 2)
                if cur['rdlane'] and (sw & cr): req = max(req, 4)
                if p['dl']:
                    if cur['dl'] == p['dl']:
                        if vw & set(cur['srcs']): req = max(req, 3)
                    elif vw & (cr | cw): req = max(req, 3)
            if p['mfma']:
                if cur['mfma']:
                    if pw & set(cur['ab']): req = max(req, 8)
                    sc = set(cur['srcc'])
                    if (pw & sc) and sc != pw: req = max(req, 6)
                elif (cur['valu'] or cur['vmem'] or cur['ds']) and (pw & (cr | cw)): req = max(req, 8)
                if cur['valu'] and (set(p['srcc']) & cw): req = max(req, 3)
            if p['salu'] and ('m0', 0) in pw and cur['ldsdma']: req = max(req, 1)
            if p['store_wide'] and (cur['valu'] or cur['vmem'] or cur['ds']) and (set(p['sdata']) & cw): req = max(req, 2)
            if req > dist: n = max(n, req - dist)
        return n
    for line in lines:
        ps = parse(line)
        if ps is None:
            out.append(line); continue
        mn, ops, mods = ps
        cur = classify(mn, ops, mods)
        n = need(cur)
        if n > 0:
            k = n
            while k > 0:
                c = min(k, 16)
                out.append(f's_nop {c-1}')
                hist += [None]*c
                k -= c
        out.append(line)
        if mn == 's_nop':
            hist += [None]*nop_count(mn, ops)
        else:
            hist.append(cur)
        hist = hist[-32:]
    return out
```

```python
import sys, struct, argparse
from emit import Emitter, hazard_pass

def f2u(x): return struct.unpack('<I', struct.pack('<f', x))[0]
def H(x): return hex(f2u(x))

KNAME = 'recurrent_scan__mha_block_cached__geglu_ffn__decode_kernel'

class Cfg:
    NS = 4
    TS = False
    SPIN = 40000
    POL = 'nt'
    WPOL = 'nt'
    STRIP = 0
    NOPRO = False
    NOTAIL = False

WS_CNT = 0
WS_Q   = 8192
WS_F1  = WS_Q + 32*3072
WS_O   = WS_F1 + 48*1024
OSLOT  = 3200; OB = 800
WS_S   = WS_O + 256*OSLOT
WS_D   = WS_S + 32*10240
WS_TS  = WS_D + 3*10240
WS_USED = 2*1024*1024
WS_E = WS_USED - 256
L_W2 = 32768
L_W  = 0
L_WO = 81920
L_XN = 131072
L_Q  = L_XN + 5120
L_O  = L_Q + 1536
L_END = L_O + 1536
SLOT = 784
D_Q = 0; D_F1 = 32; D_CLR = 48; D_DUMMY = 60
KBYTES = 402653184
LOG2E = 1.4426950408889634
SCALE = 192 ** -0.5
NEG = -1.0e30
SENT = 0xFFFFFFFF

sWAVE='s3'; sH='s4'; sJ='s5'; sROLE='s6'; sTMP='s7'
K_SRD='s[8:11]'; V_SRD='s[12:15]'; WS_SRD='s[16:19]'; W_SRD='s[20:23]'
sSTRIDE='s24'; sWOFF='s25'; sOUT='s26'; sBSTR='s27'; sFLAG='s28'; sKR='s29'
sHBASE='s30'; sCURB='s31'; sOFF='s32'; sT0='s33'; sT1='s34'; sT2='s35'; sSPIN='s36'; sNST='s37'
sEX='s[38:39]'; sT3='s40'; sT4='s41'
pX='s[44:45]'; pK=(46,47); pV=(48,49); pWQ=(50,51); pWO=(52,53); pWG=(56,57); pWU=(58,59); pWD=(60,61); pOUT=(62,63)
pDBG='s[64:65]'; pWS='s[66:67]'
sE0='s68'; sE1='s69'; sTAG0='s42'; sTAG1='s43'
def sT(s): return f's{70+s}'
sTSB = 80
vLANE='v1'; vKV='v2'; vCNT='v3'; vONE='v4'
vFL='v14'; vQA='v15'
Q0=16; ACC=28; vM='v52'; vL='v53'
T0=54
RING=64

def gen(cfg):
    e = Emitter()
    NS = cfg.NS
    POL = cfg.POL; WPOL = cfg.WPOL
    NV = RING + 24*NS
    NV = max(NV, 160)
    def kreg(s,i): return RING + s*24 + i*4
    def vreg(s,i): return RING + s*24 + 12 + i*4
    def t(i): return f'v{T0+i}'
    tsn = [0]
    def stamp(k):
        if cfg.TS:
            e(f's_memrealtime s[96:97]')
            e('s_waitcnt lgkmcnt(0)')
            e(f's_mov_b32 s{sTSB+k}, s96')
    def wave_red(v, tmp, op):
        for d in ('quad_perm:[1,0,3,2]','quad_perm:[2,3,0,1]','row_half_mirror','row_mirror'):
            e(f'{op}_dpp {v}, {v}, {v} {d} row_mask:0xf bank_mask:0xf')
        e(f'v_mov_b32 {tmp}, {v}')
        e(f'v_permlane16_swap_b32 {v}, {tmp}')
        e(f'{op} {v}, {v}, {tmp}')
        e(f'v_mov_b32 {tmp}, {v}')
        e(f'v_permlane32_swap_b32 {v}, {tmp}')
        e(f'{op} {v}, {v}, {tmp}')
    def rne(dst, src):
        e(f'v_cvt_pk_bf16_f32 {dst}, {src}, {src}')
        e(f'v_and_b32 {dst}, 0xffff0000, {dst}')
    def spin_poll(lbl, vaddr_off_dword, expect, cmp='eq'):
        e(f's_mov_b32 {sSPIN}, 0')
        e.label(lbl)
        e(f'global_load_dword {t(9)}, {t(8)}, {pDBG} sc1')
        e('s_waitcnt vmcnt(0)')
        e(f'v_readfirstlane_b32 {sT0}, {t(9)}')
        e(f's_cmp_eq_u32 {sT0}, {expect}')
        e(f's_cbranch_scc1 {lbl}_ok')
        e(f's_add_u32 {sSPIN}, {sSPIN}, 1')
        e(f's_cmp_lt_u32 {sSPIN}, {cfg.SPIN}')
        e(f's_cbranch_scc0 {lbl}_ok')
        e('s_sleep 2')
        e(f's_branch {lbl}')
        e.label(f'{lbl}_ok')

    CPB = 1024 // NS
    LCPB = CPB.bit_length() - 1
    TOTC = 4 * CPB
    sCUR = sT(0); sNXT = sT(1)
    def vKVs(s): return f'v{5+s}'
    vTK = 'v13'
    def chunk_to_off(st):
        e(f's_lshr_b32 {sT1}, {st}, {LCPB}')
        e(f's_and_b32 {sT2}, {st}, {CPB-1}')
        e(f's_mul_i32 {sT1}, {sT1}, {32*8192*384}')
        e(f's_mul_i32 {sT2}, {sT2}, {3072*NS}')
        e(f's_add_u32 {sOFF}, {sT1}, {sT2}')
        e(f's_add_u32 {sOFF}, {sOFF}, {sHBASE}')
        e(f's_cmp_lt_u32 {st}, {TOTC}')
        e(f's_cselect_b32 {sOFF}, {sOFF}, 0')
        e(f's_cselect_b32 s10, s10, 0')
        e(f's_cselect_b32 s14, s14, 0')
    def issueK(s):
        for i in range(3):
            b = kreg(s,i)
            e(f'buffer_load_dwordx4 v[{b}:{b+3}], {vKVs(s)}, {K_SRD}, {sOFF} offen offset:{i*128} {POL}')
    def issueV(s):
        for i in range(3):
            b = vreg(s,i)
            e(f'buffer_load_dwordx4 v[{b}:{b+3}], {vKVs(s)}, {V_SRD}, {sOFF} offen offset:{i*128} {POL}')
    def kv_prefetch():
        e(f's_lshl_b32 {sCUR}, {sJ}, 3')
        e(f's_add_u32 {sCUR}, {sCUR}, {sWAVE}')
        chunk_to_off(sCUR)
        for s in range(NS):
            issueK(s)
            issueV(s)
        e(f's_sub_u32 {sT1}, {sCUR}, 64')
        e(f'v_mov_b32 {vTK}, {sT1}')

    e.label(KNAME)
    e('s_cmp_ge_u32 s2, 256')
    e('s_cbranch_scc1 L_END')
    e('s_load_dwordx16 s[44:59], s[0:1], 0')
    e('s_load_dwordx8 s[60:67], s[0:1], 64')
    stamp(0)
    e(f'v_and_b32 {vLANE}, 63, v0')
    e(f'v_lshrrev_b32 {t(0)}, 6, v0')
    e(f'v_readfirstlane_b32 {sWAVE}, {t(0)}')
    e(f's_lshr_b32 {sH}, s2, 3')
    e(f's_and_b32 {sJ}, s2, 7')
    e(f'v_lshrrev_b32 {t(0)}, 3, {vLANE}')
    e(f'v_mul_u32_u24 {vKV}, 384, {t(0)}')
    e(f'v_and_b32 {t(1)}, 7, {vLANE}')
    e(f'v_lshlrev_b32 {t(2)}, 4, {t(1)}')
    e(f'v_add_u32 {vKV}, {vKV}, {t(2)}')
    for sl in range(NS): e(f'v_add_u32 {vKVs(sl)}, {3072*sl}, {vKV}')
    e(f'v_lshlrev_b32 {vFL}, 3, {t(1)}')
    e(f'v_add_u32 {vFL}, {vFL}, {t(0)}')
    e(f'v_lshlrev_b32 {vFL}, 2, {vFL}')
    e(f'v_add_u32 {vQA}, {L_Q}, {t(2)}')
    e(f'v_mov_b32 {vONE}, 1')
    e(f's_lshl_b32 {sT0}, {sH}, 8')
    e(f's_add_u32 {sT0}, {sT0}, {WS_CNT}')
    e(f'v_mov_b32 {vCNT}, {sT0}')
    e(f's_mul_i32 {sHBASE}, {sH}, {8192*384}')
    e(f's_mov_b32 {sROLE}, 0')
    e('s_waitcnt lgkmcnt(0)')
    e(f's_mov_b32 s8, s{pK[0]}');  e(f's_mov_b32 s9, s{pK[1]}');  e(f's_mov_b32 s10, {KBYTES}'); e('s_mov_b32 s11, 0x20000')
    e(f's_mov_b32 s12, s{pV[0]}'); e(f's_mov_b32 s13, s{pV[1]}'); e(f's_mov_b32 s14, {KBYTES}'); e('s_mov_b32 s15, 0x20000')
    e('s_mov_b32 s16, s66'); e('s_mov_b32 s17, s67'); e(f's_mov_b32 s18, {WS_USED}'); e('s_mov_b32 s19, 0x20000')
    e(f's_mov_b32 s20, s{pWQ[0]}'); e(f's_mov_b32 s21, s{pWQ[1]}'); e(f's_mov_b32 s22, {640*12288}'); e('s_mov_b32 s23, 0x20000')
    e(f's_mov_b32 {sSTRIDE}, 12288'); e(f's_mov_b32 {sWOFF}, 0'); e(f's_mov_b32 {sOUT}, 0'); e(f's_mov_b32 {sBSTR}, 0'); e(f's_mov_b32 {sFLAG}, 0'); e(f's_mov_b32 {sKR}, 0')
    e(f's_cmp_lt_u32 {sJ}, 3')
    e('s_cbranch_scc1 L_roleA')
    e(f's_cmp_eq_u32 {sJ}, 3')
    e('s_cbranch_scc1 L_roleB3')
    e(f's_cmp_eq_u32 {sJ}, 4')
    e('s_cbranch_scc1 L_roleB4')
    e(f's_cmp_eq_u32 {sJ}, 7')
    e('s_cbranch_scc1 L_roledone')
    e(f's_cmp_lt_u32 {sH}, 16')
    e('s_cbranch_scc1 L_roledone')
    e(f's_sub_u32 {sT0}, {sH}, 16')
    e(f's_lshl_b32 {sT0}, {sT0}, 1')
    e(f's_add_u32 {sT0}, {sT0}, {sJ}')
    e(f's_sub_u32 {sT0}, {sT0}, 5')
    e(f's_cmp_ge_u32 {sT0}, 30')
    e('s_cbranch_scc1 L_roledone')
    e(f's_mov_b32 {sROLE}, 2')
    e(f's_cmp_ge_u32 {sT0}, 10'); e(f's_cselect_b32 {sKR}, 1, 0')
    e(f's_cmp_ge_u32 {sT0}, 20'); e(f's_cselect_b32 {sKR}, 2, {sKR}')
    e(f's_mul_i32 {sT1}, {sKR}, 10')
    e(f's_sub_u32 {sT0}, {sT0}, {sT1}')
    e(f's_mov_b32 s20, s{pWD[0]}'); e(f's_mov_b32 s21, s{pWD[1]}'); e(f's_mov_b32 s22, {1536*1280}')
    e(f's_mov_b32 {sSTRIDE}, 1280')
    e(f's_mul_i32 {sWOFF}, {sKR}, {512*1280}')
    e(f's_lshl_b32 {sT1}, {sT0}, 7')
    e(f's_add_u32 {sWOFF}, {sWOFF}, {sT1}')
    e(f's_mul_i32 {sOUT}, {sKR}, 10240')
    e(f's_lshl_b32 {sT1}, {sT0}, 8')
    e(f's_add_u32 {sOUT}, {sOUT}, {sT1}')
    e(f's_add_u32 {sOUT}, {sOUT}, {WS_D}')
    e(f's_mov_b32 {sBSTR}, 2560')
    e('s_branch L_roledone')
    e.label('L_roleA')
    e(f's_mov_b32 {sROLE}, 1')
    e(f's_mul_i32 {sWOFF}, {sH}, 384')
    e(f's_lshl_b32 {sT1}, {sJ}, 7')
    e(f's_add_u32 {sWOFF}, {sWOFF}, {sT1}')
    e(f's_mul_i32 {sOUT}, {sH}, 3072')
    e(f's_lshl_b32 {sT1}, {sJ}, 10')
    e(f's_add_u32 {sOUT}, {sOUT}, {sT1}')
    e(f's_add_u32 {sOUT}, {sOUT}, {WS_Q}')
    e(f's_mov_b32 {sBSTR}, 768')
    e(f's_add_u32 {sFLAG}, {sH}, {D_Q}')
    e('s_branch L_roledone')
    e.label('L_roleB4')
    e(f's_cmp_ge_u32 {sH}, 16')
    e('s_cbranch_scc1 L_roledone')
    e(f's_add_u32 {sT0}, {sH}, 32')
    e('s_branch L_roleB')
    e.label('L_roleB3')
    e(f's_mov_b32 {sT0}, {sH}')
    e.label('L_roleB')
    e(f's_mov_b32 {sROLE}, 1')
    e(f's_lshl_b32 {sOUT}, {sT0}, 10')
    e(f's_add_u32 {sOUT}, {sOUT}, {WS_F1}')
    e(f's_mov_b32 {sBSTR}, 256')
    e(f's_cmp_lt_u32 {sT0}, 24')
    e(f's_cselect_b32 s20, s{pWG[0]}, s{pWU[0]}')
    e(f's_cselect_b32 s21, s{pWG[1]}, s{pWU[1]}')
    e(f's_cselect_b32 {sT1}, 0, 24')
    e(f's_sub_u32 {sT0}, {sT0}, {sT1}')
    e(f's_mov_b32 s22, {640*3072}')
    e(f's_mov_b32 {sSTRIDE}, 3072')
    e(f's_lshl_b32 {sWOFF}, {sT0}, 7')
    e(f's_lshr_b32 {sFLAG}, {sT0}, 3')
    e(f's_add_u32 {sFLAG}, {sFLAG}, {D_F1}')
    e.label('L_roledone')
    stamp(1)

    RT = RING
    def dma_rows(n, rows_per_wave_expr_sgpr, lds_base):
        e(f'v_lshrrev_b32 {t(0)}, 3, {vLANE}')
        e(f'v_mul_lo_u32 {t(0)}, {t(0)}, {sSTRIDE}')
        e(f'v_and_b32 {t(1)}, 7, {vLANE}')
        e(f'v_lshlrev_b32 {t(1)}, 4, {t(1)}')
        e(f'v_add_u32 {t(0)}, {t(0)}, {t(1)}')
        e(f's_mul_i32 {sT1}, {sT0}, {sSTRIDE}')
        e(f's_add_u32 {sT1}, {sT1}, {sWOFF}')
        e(f's_lshl_b32 {sT0}, {sT0}, 7')
        e(f's_add_u32 {sT0}, {sT0}, {lds_base}')
        e(f's_lshl_b32 {sT2}, {sSTRIDE}, 3')
        for i in range(n):
            e(f's_mov_b32 m0, {sT0}')
            e(f'buffer_load_dwordx4 {t(0)}, {W_SRD}, {sT1} offen {WPOL} lds')
            if i < n-1:
                e(f's_add_u32 {sT0}, {sT0}, 1024')
                e(f's_add_u32 {sT1}, {sT1}, {sT2}')
    def make_tags():
        e(f's_add_u32 {sTAG0}, {sE0}, 1')
        e(f's_not_b32 {sTAG1}, {sE1}')

    if cfg.NOPRO:
        kv_prefetch()
        e('s_branch L_pre_b3')
    e(f's_mov_b32 {sT0}, {WS_E}')
    e(f's_load_dwordx2 s[68:69], {pWS}, {sT0}')
    e(f's_cmp_ge_u32 {sWAVE}, 4')
    e('s_cbranch_scc1 L_hi_waves')
    e(f's_cmp_eq_u32 {sWAVE}, 0')
    e('s_cbranch_scc0 L_noprio')
    e('s_setprio 3')
    e(f's_cmp_eq_u32 {sJ}, 0')
    e('s_cbranch_scc0 L_noprio')
    e('v_mov_b32 v18, 0')
    e('s_mov_b64 exec, 1')
    e(f'global_store_dword {vCNT}, v18, {pWS} sc1')
    e('s_mov_b64 exec, -1')
    e.label('L_noprio')
    e(f's_cmp_eq_u32 {sROLE}, 1')
    e('s_cbranch_scc0 L_lo_not1')
    e('s_mov_b32 s92, s44'); e('s_mov_b32 s93, s45'); e('s_mov_b32 s94, 5120'); e('s_mov_b32 s95, 0x20000')
    e(f's_mul_i32 {sT0}, {sWAVE}, 1280')
    e(f'v_lshlrev_b32 {t(8)}, 2, {vLANE}')
    X0 = 16
    for i in range(5):
        e(f'buffer_load_dword v{X0+i}, {t(8)}, s[92:95], {sT0} offen offset:{i*256}')
    e(f's_mul_i32 {sT0}, {sWAVE}, 160')
    dma_rows(20, None, L_W)
    e('s_waitcnt vmcnt(20)')
    U0 = 24
    for i in range(5):
        e(f'v_lshlrev_b32 v{U0+2*i}, 16, v{X0+i}')
        e(f'v_and_b32 v{U0+2*i+1}, 0xffff0000, v{X0+i}')
    sm = 'v36'; tm = 'v37'; mean = 'v38'; var = 'v39'; den = 'v40'; rc = 'v41'
    e(f'v_add_f32 {sm}, v{U0}, v{U0+1}')
    for i in range(2,10): e(f'v_add_f32 {sm}, {sm}, v{U0+i}')
    wave_red(sm, tm, 'v_add_f32')
    e(f'v_mul_f32 {mean}, {H(1.0/640)}, {sm}')
    e(f'v_sub_f32 v42, v{U0}, {mean}')
    e(f'v_mul_f32 {var}, v42, v42')
    for i in range(1,10):
        e(f'v_sub_f32 v42, v{U0+i}, {mean}')
        e(f'v_fmac_f32 {var}, v42, v42')
    wave_red(var, tm, 'v_add_f32')
    e(f'v_mul_f32 {var}, {H(1.0/640)}, {var}')
    rne(mean, mean)
    rne(var, var)
    e(f'v_add_f32 {var}, {H(1e-5)}, {var}')
    rne(var, var)
    e(f'v_sqrt_f32 {den}, {var}')
    rne(den, den)
    e(f'v_rcp_f32 {rc}, {den}')
    e(f's_mul_i32 {sT0}, {sWAVE}, 1280')
    e(f's_add_u32 {sT0}, {sT0}, {L_XN}')
    e(f'v_add_u32 {t(8)}, {sT0}, {t(8)}')
    for i in range(5):
        a = f'v{U0+2*i}'; b = f'v{U0+2*i+1}'
        e(f'v_sub_f32 {a}, {a}, {mean}')
        e(f'v_sub_f32 {b}, {b}, {mean}')
        e(f'v_cvt_pk_bf16_f32 v42, {a}, {b}')
        e(f'v_lshlrev_b32 {a}, 16, v42')
        e(f'v_and_b32 {b}, 0xffff0000, v42')
        for x in (a, b):
            e(f'v_mul_f32 v43, {x}, {rc}')
            e(f'v_fma_f32 v44, -v43, {den}, {x}')
            e(f'v_fma_f32 {x}, v44, {rc}, v43')
        e(f'v_cvt_pk_bf16_f32 v42, {a}, {b}')
        e(f'ds_write_b32 {t(8)}, v42 offset:{i*256}')
    stamp(11)
    e('s_waitcnt vmcnt(0) lgkmcnt(0)')
    e('s_barrier')
    stamp(2)
    make_tags()
    vB='v16'; vB2='v17'; vA='v18'; D=20
    def frag_addr(ldsW, rowshift, ldsX, rowbytes, colbytes_sgpr):
        e(f'v_lshrrev_b32 v24, 4, {vLANE}')
        e(f'v_and_b32 v25, 15, {vLANE}')
        e(f'v_lshrrev_b32 v26, 2, v25')
        e(f'v_and_b32 v27, 3, v25')
        e(f'v_lshlrev_b32 {vB}, 3, v24')
        e(f'v_add_u32 {vB}, {vB}, v26')
        e(f'v_lshlrev_b32 {vB}, {rowshift}, {vB}')
        e(f'v_lshlrev_b32 v27, 3, v27')
        e(f'v_add_u32 {vB}, {vB}, v27')
        e(f'v_add_u32 {vB}, {colbytes_sgpr}, {vB}')
        e(f'v_and_b32 v26, 3, {vLANE}')
        e(f'v_mul_u32_u24 {vA}, {rowbytes}, v26')
        e(f'v_lshlrev_b32 v24, 4, v24')
        e(f'v_add_u32 {vA}, {vA}, v24')
        e(f'v_add_u32 {vA}, {ldsX}, {vA}')
    e(f's_lshl_b32 {sT0}, {sWAVE}, 5')
    e(f's_add_u32 {sT0}, {sT0}, {L_W}')
    frag_addr(L_W, 7, L_XN, 1280, sT0)
    e(f'v_add_u32 {vB2}, 0x10000, {vB}')
    for i in range(4): e(f'v_mov_b32 v{D+i}, 0')
    step = 0
    while step < 20:
        nb = 5
        for k in range(nb):
            tt = step+k
            base = vB if tt < 16 else vB2
            off = (tt % 16)*4096
            r = RT + k*8
            e(f'ds_read_b64_tr_b16 v[{r}:{r+1}], {base} offset:{off}')
            e(f'ds_read_b64_tr_b16 v[{r+2}:{r+3}], {base} offset:{off+512}')
            e(f'ds_read_b128 v[{r+4}:{r+7}], {vA} offset:{tt*64}')
        for k in range(nb):
            r = RT + k*8
            e(f's_waitcnt lgkmcnt({3*(nb-1-k)})')
            e(f'v_mfma_f32_16x16x32_bf16 v[{D}:{D+3}], v[{r+4}:{r+7}], v[{r}:{r+3}], v[{D}:{D+3}]')
        step += nb
    e(f'v_mov_b32 v26, {sTAG0}')
    e(f'v_mov_b32 v27, {sTAG1}')
    e(f'v_lshlrev_b32 v28, 4, {vLANE}')
    e(f's_lshl_b32 {sT0}, {sWAVE}, 8')
    e(f's_add_u32 {sT0}, {sT0}, {sOUT}')
    e(f'v_cvt_pk_bf16_f32 v24, v{D}, v{D+1}')
    e(f'v_cvt_pk_bf16_f32 v25, v{D+2}, v{D+3}')
    e('s_mov_b64 exec, 0xffff')
    e(f'buffer_store_dwordx4 v[24:27], v28, {WS_SRD}, {sT0} offen sc1')
    e('s_mov_b64 exec, -1')
    stamp(3)
    e(f's_cmp_eq_u32 {sWAVE}, 0')
    e('s_cbranch_scc1 L_w0_q')
    e('s_branch L_lo_pref')

    e.label('L_lo_not1')
    e(f's_cmp_eq_u32 {sWAVE}, 0')
    e('s_cbranch_scc1 L_w0_q')
    e(f's_cmp_eq_u32 {sROLE}, 2')
    e('s_cbranch_scc0 L_lo_pref')
    e(f's_cmp_eq_u32 {sWAVE}, 1')
    e('s_cbranch_scc0 L_lo_pref')
    e('v_mov_b32 v20, -1')
    e(f'v_lshlrev_b32 v16, 2, {vLANE}')
    e(f's_mov_b32 {sT0}, {sOUT}')
    for b in range(4):
        e(f'buffer_store_dword v20, v16, {WS_SRD}, {sT0} offen sc1')
        if b < 3: e(f's_add_u32 {sT0}, {sT0}, 2560')
    e(f's_mov_b32 {sT0}, 0')
    dma_rows(64, None, L_W2)
    e('s_branch L_pre_b3')
    e.label('L_lo_pref')
    kv_prefetch()
    e('s_branch L_pre_b3')

    e.label('L_w0_q')
    e('s_waitcnt lgkmcnt(0)')
    make_tags()
    e(f'v_lshlrev_b32 v16, 4, {vLANE}')
    e(f's_mul_i32 {sT0}, {sH}, 3072')
    e(f's_add_u32 {sT0}, {sT0}, {WS_Q}')
    e(f's_mov_b32 {sSPIN}, 0')
    e.label('L_qpoll')
    for i in range(3):
        e(f'buffer_load_dwordx4 v[{20+4*i}:{23+4*i}], v16, {WS_SRD}, {sT0} offen offset:{i*1024} sc1')
    e('s_waitcnt vmcnt(0)')
    e(f'v_xor_b32 v32, {sTAG0}, v22')
    e(f'v_xor_b32 v33, {sTAG1}, v23')
    e('v_or_b32 v32, v32, v33')
    for i in range(1,3):
        e(f'v_xor_b32 v33, {sTAG0}, v{22+4*i}')
        e('v_or_b32 v32, v32, v33')
        e(f'v_xor_b32 v33, {sTAG1}, v{23+4*i}')
        e('v_or_b32 v32, v32, v33')
    e('v_cmp_ne_u32 vcc, 0, v32')
    e('s_cbranch_vccz L_qpoll_ok')
    e(f's_add_u32 {sSPIN}, {sSPIN}, 1')
    e(f's_cmp_lt_u32 {sSPIN}, {cfg.SPIN}')
    e('s_cbranch_scc0 L_qpoll_ok')
    e('s_sleep 1')
    e('s_branch L_qpoll')
    e.label('L_qpoll_ok')
    stamp(4)
    e(f'v_lshlrev_b32 v17, 1, {vLANE}')
    e(f'v_add_u32 v17, {L_Q}, v17')
    for i in range(3):
        e(f'ds_write_b16 v17, v{20+4*i} offset:{i*128}')
        e(f'ds_write_b16_d16_hi v17, v{20+4*i} offset:{i*128+384}')
        e(f'ds_write_b16 v17, v{21+4*i} offset:{i*128+768}')
        e(f'ds_write_b16_d16_hi v17, v{21+4*i} offset:{i*128+1152}')
    kv_prefetch()
    e('s_waitcnt lgkmcnt(0)')
    e('s_setprio 0')
    e('s_branch L_pre_b3')

    e.label('L_hi_waves')
    e(f'v_subrev_u32 v16, 256, v0')
    for i in range(4): e(f'v_mov_b32 v{20+i}, -1')
    e(f'v_lshlrev_b32 v17, 4, v16')
    e(f's_lshl_b32 {sT0}, {sH}, 3')
    e(f's_add_u32 {sT0}, {sT0}, {sJ}')
    e(f's_mul_i32 {sT0}, {sT0}, {OSLOT}')
    e(f's_add_u32 {sT0}, {sT0}, {WS_O}')
    e('v_cmp_gt_u32 vcc, 200, v16')
    e(f's_and_saveexec_b64 {sEX}, vcc')
    e('s_cbranch_execz L_clr1')
    e(f'buffer_store_dwordx4 v[20:23], v17, {WS_SRD}, {sT0} offen sc1')
    e.label('L_clr1')
    e(f's_mov_b64 exec, {sEX}')
    e(f's_cmp_lt_u32 {sJ}, 5')
    e('s_cbranch_scc0 L_clr2e')
    e(f's_mul_i32 {sT0}, {sH}, 10240')
    e(f's_lshl_b32 {sT1}, {sJ}, 9')
    e(f's_add_u32 {sT0}, {sT0}, {sT1}')
    e(f's_add_u32 {sT0}, {sT0}, {WS_S}')
    e('v_lshrrev_b32 v18, 5, v16')
    e('v_mul_u32_u24 v18, 2560, v18')
    e('v_and_b32 v19, 31, v16')
    e('v_lshlrev_b32 v19, 4, v19')
    e('v_add_u32 v18, v18, v19')
    e('v_cmp_gt_u32 vcc, 128, v16')
    e(f's_and_saveexec_b64 {sEX}, vcc')
    e('s_cbranch_execz L_clr2')
    e(f'buffer_store_dwordx4 v[20:23], v18, {WS_SRD}, {sT0} offen sc1')
    e.label('L_clr2')
    e(f's_mov_b64 exec, {sEX}')
    e.label('L_clr2e')
    def wo_dma():
        e(f's_mov_b32 s20, s{pWO[0]}'); e(f's_mov_b32 s21, s{pWO[1]}'); e(f's_mov_b32 s22, {6144*1280}')
        e(f'v_lshrrev_b32 {t(0)}, 4, {vLANE}')
        e(f'v_mul_u32_u24 {t(0)}, 1280, {t(0)}')
        e(f'v_and_b32 {t(1)}, 15, {vLANE}')
        e(f'v_lshlrev_b32 {t(1)}, 4, {t(1)}')
        e(f'v_add_u32 {t(0)}, {t(0)}, {t(1)}')
        e(f's_sub_u32 {sT0}, {sWAVE}, 4')
        e(f's_mul_i32 {sT0}, {sT0}, 48')
        e(f's_mul_i32 {sT1}, {sH}, 192')
        e(f's_add_u32 {sT1}, {sT1}, {sT0}')
        e(f's_mul_i32 {sT1}, {sT1}, 1280')
        e(f's_lshl_b32 {sT2}, {sJ}, 8')
        e(f's_add_u32 {sT1}, {sT1}, {sT2}')
        e(f's_lshl_b32 {sT0}, {sT0}, 8')
        e(f's_add_u32 {sT0}, {sT0}, {L_WO}')
        for i in range(12):
            e(f's_mov_b32 m0, {sT0}')
            e(f'buffer_load_dwordx4 {t(0)}, {W_SRD}, {sT1} offen {WPOL} lds')
            if i < 11:
                e(f's_add_u32 {sT0}, {sT0}, 1024')
                e(f's_add_u32 {sT1}, {sT1}, {4*1280}')
    e(f's_cmp_lt_u32 {sJ}, 5')
    e('s_cbranch_scc0 L_hi_nowo')
    e(f's_cmp_eq_u32 {sROLE}, 1')
    e('s_cbranch_scc0 L_hi_r0')
    wo_dma()
    e('s_barrier')
    kv_prefetch()
    e(f's_waitcnt vmcnt({6*NS+12})')
    e('s_branch L_pre_b3')
    e.label('L_hi_r0')
    kv_prefetch()
    wo_dma()
    e(f's_waitcnt vmcnt({6*NS+12})')
    e('s_branch L_pre_b3')
    e.label('L_hi_nowo')
    kv_prefetch()
    e(f's_waitcnt vmcnt({6*NS})')
    e.label('L_pre_b3')
    e('s_barrier')
    stamp(5)
    e(f's_cmp_eq_u32 {sWAVE}, 4')
    e('s_cbranch_scc0 L_noclr')
    e(f'v_mov_b32 {t(8)}, {4*D_CLR}')
    e('s_mov_b64 exec, 1')
    e(f'global_atomic_add {t(8)}, {vONE}, {pDBG}')
    e('s_mov_b64 exec, -1')
    e.label('L_noclr')
    if cfg.NOPRO: e('s_branch L_noffn2')
    e(f's_cmp_eq_u32 {sROLE}, 2')
    e('s_cbranch_scc0 L_noffn2')
    e(f's_cmp_eq_u32 {sWAVE}, 1')
    e('s_cbranch_scc0 L_noffn2')
    e('s_waitcnt vmcnt(0) lgkmcnt(0)')
    make_tags()
    e(f'v_lshlrev_b32 v16, 4, {vLANE}')
    e(f's_lshl_b32 {sT0}, {sKR}, 13')
    e(f's_add_u32 {sT0}, {sT0}, {WS_F1}')
    e(f's_mov_b32 {sSPIN}, 0')
    G0 = RING; U0_ = RING + 32
    e.label('L_f1poll')
    e(f's_mov_b32 {sT1}, {sT0}')
    for i in range(8):
        e(f'buffer_load_dwordx4 v[{G0+4*i}:{G0+4*i+3}], v16, {WS_SRD}, {sT1} offen sc1')
        e(f's_add_u32 {sT2}, {sT1}, {24*1024}')
        e(f'buffer_load_dwordx4 v[{U0_+4*i}:{U0_+4*i+3}], v16, {WS_SRD}, {sT2} offen sc1')
        if i < 7: e(f's_add_u32 {sT1}, {sT1}, 1024')
    e('s_waitcnt vmcnt(0)')
    e('v_mov_b32 v32, 0')
    for i in range(16):
        r = G0 + 4*i
        e(f'v_xor_b32 v33, {sTAG0}, v{r+2}')
        e('v_or_b32 v32, v32, v33')
        e(f'v_xor_b32 v33, {sTAG1}, v{r+3}')
        e('v_or_b32 v32, v32, v33')
    e('v_cmp_ne_u32 vcc, 0, v32')
    e('s_cbranch_vccz L_f1poll_ok')
    e(f's_add_u32 {sSPIN}, {sSPIN}, 1')
    e(f's_cmp_lt_u32 {sSPIN}, {cfg.SPIN}')
    e('s_cbranch_scc0 L_f1poll_ok')
    e('s_sleep 2')
    e('s_branch L_f1poll')
    e.label('L_f1poll_ok')
    KB_ = 0.7978845608028654; KK = 0.044715
    e(f's_mov_b32 {sT3}, {H(KK)}')
    e(f's_mov_b32 {sT4}, {H(-2.0*KB_*LOG2E)}')
    e(f'v_lshlrev_b32 v17, 1, {vLANE}')
    e(f'v_add_u32 v17, {L_XN}, v17')
    for i in range(8):
        for b in range(4):
            gs = f'v{G0+4*i+(b>>1)}'; us = f'v{U0_+4*i+(b>>1)}'
            if b & 1:
                e(f'v_and_b32 v20, 0xffff0000, {gs}'); e(f'v_and_b32 v21, 0xffff0000, {us}')
            else:
                e(f'v_lshlrev_b32 v20, 16, {gs}'); e(f'v_lshlrev_b32 v21, 16, {us}')
            g = 'v20'; u = 'v21'
            e(f'v_mul_f32 v36, {g}, {g}')
            e(f'v_mul_f32 v36, v36, {g}')
            e(f'v_fma_f32 v36, v36, {sT3}, {g}')
            e(f'v_mul_f32 v36, {sT4}, v36')
            e(f'v_exp_f32 v36, v36')
            e(f'v_add_f32 v36, 1.0, v36')
            e(f'v_rcp_f32 v37, v36')
            e(f'v_mul_f32 v40, {g}, v37')
            e(f'v_fma_f32 v39, -v40, v36, {g}')
            e(f'v_fma_f32 v38, v39, v37, v40')
            e(f'v_cmp_o_f32 vcc, v38, v38')
            e(f'v_cndmask_b32 v38, v40, v38, vcc')
            rne('v38', 'v38')
            e(f'v_mul_f32 v38, v38, {u}')
            e(f'v_cvt_pk_bf16_f32 v38, v38, v38')
            e(f'ds_write_b16 v17, v38 offset:{b*1024 + i*128}')
    e('s_waitcnt lgkmcnt(0)')
    e(f's_mov_b32 {sT0}, {L_W2}')
    frag_addr(L_W2, 7, L_XN, 1024, sT0)
    for half in range(2):
        for k in range(8):
            tt = half*8+k
            e(f'ds_read_b128 v[{RING+4*tt}:{RING+4*tt+3}], {vA} offset:{tt*64}')
        e('s_waitcnt lgkmcnt(0)')
    for i in range(16): e(f'v_mov_b32 v{20+i}, 0')
    BR = RING + 64
    for tile in range(4):
        for grp in range(4):
            for k in range(4):
                tt = grp*4+k
                r = BR + k*4
                e(f'ds_read_b64_tr_b16 v[{r}:{r+1}], {vB} offset:{tt*4096 + tile*32}')
                e(f'ds_read_b64_tr_b16 v[{r+2}:{r+3}], {vB} offset:{tt*4096 + tile*32 + 512}')
            for k in range(4):
                tt = grp*4+k
                r = BR + k*4
                e(f's_waitcnt lgkmcnt({2*(3-k)})')
                e(f'v_mfma_f32_16x16x32_bf16 v[{20+4*tile}:{23+4*tile}], v[{RING+4*tt}:{RING+4*tt+3}], v[{r}:{r+3}], v[{20+4*tile}:{23+4*tile}]')
    e(f'v_lshlrev_b32 v16, 2, {vLANE}')
    e('s_mov_b64 exec, 0xffff')
    for b in range(4):
        e(f's_mul_i32 {sT0}, {sBSTR}, {b}')
        e(f's_add_u32 {sT0}, {sT0}, {sOUT}')
        for tile in range(4):
            e(f'buffer_store_dword v{20+4*tile+b}, v16, {WS_SRD}, {sT0} offen offset:{tile*64} sc1')
    e('s_mov_b64 exec, -1')
    kv_prefetch()
    e.label('L_noffn2')

    e(f's_mul_i32 {sT0}, {sWAVE}, {4*SLOT}')
    e(f's_add_u32 {sT0}, {sT0}, {L_W}')
    e(f'v_lshlrev_b32 {t(0)}, 4, {vLANE}')
    e(f'v_add_u32 {t(0)}, {sT0}, {t(0)}')
    for i in range(4): e(f'v_mov_b32 {t(4+i)}, 0')
    pair = f'v[{T0+4}:{T0+7}]'
    for i in range(3): e(f'ds_write_b128 {t(0)}, {pair} offset:{i*1024}')
    e('s_mov_b64 exec, 0xf')
    e(f'ds_write_b128 {t(0)}, {pair} offset:3072')
    e(f'v_mul_u32_u24 {t(1)}, {SLOT}, {vLANE}')
    e(f'v_add_u32 {t(1)}, {sT0}, {t(1)}')
    e(f'v_mov_b32 {t(2)}, {H(NEG)}')
    e(f'ds_write_b32 {t(1)}, {t(2)} offset:768')
    e('s_mov_b64 exec, -1')
    def load_q():
        e(f's_mul_i32 {sT0}, {sCURB}, 384')
        e(f'v_add_u32 {t(0)}, {sT0}, {vQA}')
        for i in range(3):
            e(f'ds_read_b128 v[{Q0+4*i}:{Q0+4*i+3}], {t(0)} offset:{i*128}')
    def reset_state():
        for i in range(24): e(f'v_mov_b32 v{ACC+i}, 0')
        e(f'v_mov_b32 {vM}, {H(NEG)}')
        e(f'v_mov_b32 {vL}, 0')
    e(f's_mov_b32 {sCURB}, 0')
    if cfg.TS:
        e(f's_mov_b32 {sNST}, 0')
        e('s_mov_b32 s76, 0'); e('s_mov_b32 s77, 0'); e('s_mov_b32 s78, 0')
        e('s_memtime s[98:99]')
        e('s_waitcnt lgkmcnt(0)')
        e('s_mov_b32 s79, s98')
    load_q()
    reset_state()
    e(f's_mov_b32 {sT3}, {H(SCALE)}')
    e(f's_mov_b32 {sT4}, {H(LOG2E)}')
    e('s_waitcnt lgkmcnt(0)')

    def flush():
        M = t(0); tmp = t(1); sc = t(2); Ls = t(3)
        e(f'v_mov_b32 {M}, {vM}')
        e(f'v_max_f32_dpp {M}, {M}, {M} row_ror:8 row_mask:0xf bank_mask:0xf')
        e(f'v_mov_b32 {tmp}, {M}')
        e(f'v_permlane16_swap_b32 {M}, {tmp}')
        e(f'v_max_f32 {M}, {M}, {tmp}')
        e(f'v_mov_b32 {tmp}, {M}')
        e(f'v_permlane32_swap_b32 {M}, {tmp}')
        e(f'v_max_f32 {M}, {M}, {tmp}')
        e(f'v_sub_f32 {sc}, {vM}, {M}')
        e(f'v_mul_f32 {sc}, {sT4}, {sc}')
        e(f'v_exp_f32 {sc}, {sc}')
        e(f'v_mul_f32 {Ls}, {vL}, {sc}')
        for i in range(24): e(f'v_mul_f32 v{ACC+i}, v{ACC+i}, {sc}')
        e(f'v_add_f32_dpp {Ls}, {Ls}, {Ls} row_ror:8 row_mask:0xf bank_mask:0xf')
        e(f'v_mov_b32 {tmp}, {Ls}')
        e(f'v_permlane16_swap_b32 {Ls}, {tmp}')
        e(f'v_add_f32 {Ls}, {Ls}, {tmp}')
        e(f'v_mov_b32 {tmp}, {Ls}')
        e(f'v_permlane32_swap_b32 {Ls}, {tmp}')
        e(f'v_add_f32 {Ls}, {Ls}, {tmp}')
        A = lambda i, x: f'v{ACC+i*8+x}'
        for i in range(3):
            for x in range(4): e(f'v_permlane32_swap_b32 {A(i,x)}, {A(i,x+4)}')
        for i in range(3):
            for x in range(4): e(f'v_add_f32 {A(i,x)}, {A(i,x)}, {A(i,x+4)}')
        for i in range(3):
            for x in range(2): e(f'v_permlane16_swap_b32 {A(i,x)}, {A(i,x+2)}')
        for i in range(3):
            for x in range(2): e(f'v_add_f32 {A(i,x)}, {A(i,x)}, {A(i,x+2)}')
        for i in range(3):
            e(f'v_add_f32_dpp {A(i,0)}, {A(i,0)}, {A(i,0)} row_ror:8 row_mask:0xf bank_mask:0x3')
        for i in range(3):
            e(f'v_add_f32_dpp {A(i,0)}, {A(i,1)}, {A(i,1)} row_ror:8 row_mask:0xf bank_mask:0xc')
        e(f's_lshl_b32 {sT0}, {sWAVE}, 2')
        e(f's_add_u32 {sT0}, {sT0}, {sCURB}')
        e(f's_mul_i32 {sT0}, {sT0}, {SLOT}')
        e(f's_add_u32 {sT0}, {sT0}, {L_W}')
        e(f'v_add_u32 {tmp}, {sT0}, {vFL}')
        for i in range(3): e(f'ds_write_b32 {tmp}, {A(i,0)} offset:{i*256}')
        e(f'v_mov_b32 {tmp}, {sT0}')
        e(f'v_mov_b32 {t(1+3)}, {M}')
        e(f'v_mov_b32 {t(5)}, {Ls}')
        e('s_mov_b64 exec, 1')
        e(f'ds_write_b64 {tmp}, v[{T0+4}:{T0+5}] offset:768')
        e('s_mov_b64 exec, -1')

    outofline = []
    e.label('L_loop')
    e(f's_cmp_ge_u32 {sCUR}, {TOTC}')
    e('s_cbranch_scc1 L_exit')
    e(f's_lshr_b32 {sT0}, {sCUR}, {LCPB}')
    e(f's_cmp_lg_u32 {sT0}, {sCURB}')
    e('s_cbranch_scc1 L_sw')
    e.label('L_swret')
    if cfg.TS: e(f's_add_u32 {sNST}, {sNST}, {NS}')
    for s in range(NS):
        NK = 3 + 6*(NS-1) if s == 0 else 6*NS - 2
        NVw = 6*NS - 2
        e(f's_waitcnt vmcnt({NK})')
        k = lambda i: f'v{kreg(s,0)+i}'
        q = lambda i: f'v{Q0+i}'
        d0, d1, d2 = t(0), t(1), t(2)
        e(f'v_dot2_f32_bf16 {d0}, {k(0)}, {q(0)}, 0')
        e(f'v_dot2_f32_bf16 {d1}, {k(4)}, {q(4)}, 0')
        e(f'v_dot2_f32_bf16 {d2}, {k(8)}, {q(8)}, 0')
        if s == 0: e(f'v_readfirstlane_b32 {sNXT}, {vTK}')
        else: e('s_nop 0')
        for w in range(1,4):
            e(f'v_dot2c_f32_bf16 {d0}, {k(w)}, {q(w)}')
            e(f'v_dot2c_f32_bf16 {d1}, {k(4+w)}, {q(4+w)}')
            e(f'v_dot2c_f32_bf16 {d2}, {k(8+w)}, {q(8+w)}')
        if s == 0:
            e(f's_add_u32 {sNXT}, {sNXT}, 128')
            chunk_to_off(sNXT)
            e('s_mov_b64 exec, 1')
            e(f'global_atomic_add {vTK}, {vCNT}, {vONE}, {pWS} sc0')
            e('s_mov_b64 exec, -1')
        issueK(s)
        e(f'v_add_f32 {d0}, {d0}, {d1}')
        e(f'v_add_f32 {d0}, {d0}, {d2}')
        for d in ('quad_perm:[1,0,3,2]','quad_perm:[2,3,0,1]','row_half_mirror'):
            if not (cfg.STRIP & 4): e(f'v_add_f32_dpp {d0}, {d0}, {d0} {d} row_mask:0xf bank_mask:0xf')
        if not (cfg.STRIP & 2):
            rne(d0, d0)
            e(f'v_mul_f32 {d0}, {sT3}, {d0}')
            rne(d0, d0)
            e(f'v_cmp_gt_f32 vcc, {d0}, {vM}')
            e(f's_cbranch_vccnz L_rs{s}')
        e.label(f'L_rsret{s}')
        if not (cfg.STRIP & 2):
            e(f'v_sub_f32 {d1}, {d0}, {vM}')
            e(f'v_mul_f32 {d1}, {sT4}, {d1}')
            e(f'v_exp_f32 {d1}, {d1}')
            e(f'v_add_f32 {vL}, {vL}, {d1}')
        e(f'v_cvt_pk_bf16_f32 {t(3)}, {d1}, 0')
        e(f'v_cvt_pk_bf16_f32 {t(4)}, 0, {d1}')
        e(f's_waitcnt vmcnt({NVw})')
        for i in range(3):
            for w in range(4):
                vv = f'v{vreg(s,i)+w}'
                e(f'v_dot2c_f32_bf16 v{ACC+i*8+2*w}, {vv}, {t(3)}')
                if not (cfg.STRIP & 1): e(f'v_dot2c_f32_bf16 v{ACC+i*8+2*w+1}, {vv}, {t(4)}')
        issueV(s)
        def mk(s):
            def f():
                e.label(f'L_rs{s}')
                e(f'v_max_f32 {t(1)}, {vM}, {t(0)}')
                e(f'v_sub_f32 {t(2)}, {vM}, {t(1)}')
                e(f'v_mul_f32 {t(2)}, {sT4}, {t(2)}')
                e(f'v_exp_f32 {t(2)}, {t(2)}')
                e(f'v_mov_b32 {vM}, {t(1)}')
                e(f'v_mul_f32 {vL}, {vL}, {t(2)}')
                for i in range(24): e(f'v_mul_f32 v{ACC+i}, v{ACC+i}, {t(2)}')
                e(f's_branch L_rsret{s}')
            return f
        outofline.append(mk(s))
    e(f's_mov_b32 {sCUR}, {sNXT}')
    e('s_branch L_loop')
    e.label('L_sw')
    flush()
    e(f's_lshr_b32 {sCURB}, {sCUR}, {LCPB}')
    if cfg.TS:
        e('s_memrealtime s[96:97]')
        e('s_waitcnt lgkmcnt(0)')
        e(f's_cmp_eq_u32 {sCURB}, 1'); e('s_cselect_b32 s76, s96, s76')
        e(f's_cmp_eq_u32 {sCURB}, 2'); e('s_cselect_b32 s77, s96, s77')
        e(f's_cmp_eq_u32 {sCURB}, 3'); e('s_cselect_b32 s78, s96, s78')
    load_q()
    reset_state()
    e('s_waitcnt lgkmcnt(0)')
    e('s_branch L_swret')
    for f in outofline: f()

    e.label('L_exit')
    stamp(6)
    if cfg.TS:
        e('s_memtime s[98:99]')
        e('s_waitcnt lgkmcnt(0)')
        e('s_sub_u32 s79, s98, s79')
    e(f'v_mov_b32 {t(8)}, {4*D_CLR}')
    e('s_waitcnt vmcnt(0)')
    e(f'global_load_dword {t(9)}, {t(8)}, {pDBG} sc1')
    flush()
    e('s_waitcnt lgkmcnt(0)')
    e('s_barrier')
    stamp(7)
    if cfg.NOTAIL: e('s_branch L_END2')
    e(f's_cmp_lt_u32 {sJ}, 5')
    e('s_cbranch_scc0 L_nopre')
    e(f'v_lshrrev_b32 v24, 4, {vLANE}')
    e(f'v_and_b32 v25, 15, {vLANE}')
    e(f'v_lshrrev_b32 v26, 2, v25')
    e(f'v_and_b32 v27, 3, v25')
    e(f'v_lshlrev_b32 v16, 3, v24')
    e(f'v_add_u32 v16, v16, v26')
    e(f'v_lshlrev_b32 v16, 8, v16')
    e(f'v_lshlrev_b32 v27, 3, v27')
    e(f'v_add_u32 v16, v16, v27')
    e(f's_lshl_b32 {sT0}, {sWAVE}, 5')
    e(f's_add_u32 {sT0}, {sT0}, {L_WO}')
    e(f'v_add_u32 v16, {sT0}, v16')
    for k in range(6):
        e(f'ds_read_b64_tr_b16 v[{64+4*k}:{65+4*k}], v16 offset:{k*8192}')
        e(f'ds_read_b64_tr_b16 v[{66+4*k}:{67+4*k}], v16 offset:{k*8192+1024}')
    e.label('L_nopre')
    e(f's_cmp_ge_u32 {sWAVE}, 3')
    e('s_cbranch_scc1 L_tail_hi')
    e(f'v_mul_u32_u24 v16, 1366, v0')
    e(f'v_lshrrev_b32 v16, 16, v16')
    e(f'v_mul_u32_u24 v17, 48, v16')
    e(f'v_sub_u32 v17, v0, v17')
    e(f'v_mul_u32_u24 v18, {SLOT}, v16')
    e(f'v_add_u32 v18, {L_W}, v18')
    e(f'v_lshlrev_b32 v19, 4, v17')
    e(f'v_add_u32 v19, v18, v19')
    for w in range(8):
        e(f'ds_read_b64 v[{20+2*w}:{21+2*w}], v18 offset:{w*4*SLOT+768}')
    e('s_waitcnt lgkmcnt(0)')
    for w in range(8):
        e(f'ds_read_b128 v[{96+4*w}:{99+4*w}], v19 offset:{w*4*SLOT}')
    e('v_max_f32 v36, v20, v22')
    for w in range(2,8): e(f'v_max_f32 v36, v36, v{20+2*w}')
    for w in range(8):
        e(f'v_sub_f32 v{20+2*w}, v{20+2*w}, v36')
        e(f'v_mul_f32 v{20+2*w}, {sT4}, v{20+2*w}')
        e(f'v_exp_f32 v{20+2*w}, v{20+2*w}')
    e('v_mul_f32 v37, v20, v21')
    for w in range(1,8): e(f'v_fmac_f32 v37, v{20+2*w}, v{21+2*w}')
    e('s_waitcnt lgkmcnt(0)')
    for x in range(4): e(f'v_mul_f32 v{40+x}, v20, v{96+x}')
    for w in range(1,8):
        for x in range(4): e(f'v_fmac_f32 v{40+x}, v{20+2*w}, v{96+4*w+x}')
    e(f's_lshl_b32 {sT0}, {sH}, 3')
    e(f's_add_u32 {sT0}, {sT0}, {sJ}')
    e(f's_mul_i32 {sT0}, {sT0}, {OSLOT}')
    e(f's_add_u32 {sT0}, {sT0}, {WS_O}')
    e(f'v_mul_u32_u24 v18, {OB}, v16')
    e(f'v_lshlrev_b32 v19, 4, v17')
    e(f'v_add_u32 v19, v18, v19')
    e(f'buffer_store_dwordx4 v[40:43], v19, {WS_SRD}, {sT0} offen sc1')
    e('v_mov_b32 v38, 0'); e('v_mov_b32 v39, 0')
    e('v_cmp_eq_u32 vcc, 0, v17')
    e(f's_and_saveexec_b64 {sEX}, vcc')
    e('s_cbranch_execz L_noml')
    e(f'buffer_store_dwordx4 v[36:39], v18, {WS_SRD}, {sT0} offen offset:768 sc1')
    e.label('L_noml')
    e(f's_mov_b64 exec, {sEX}')
    stamp(8)
    e(f's_cmp_lt_u32 {sJ}, 5')
    e('s_cbranch_scc0 L_END2')
    def cleared_check(lbl):
        e('s_waitcnt vmcnt(0)')
        e(f'v_readfirstlane_b32 {sT0}, {t(9)}')
        e(f's_cmp_eq_u32 {sT0}, 256')
        e(f's_cbranch_scc1 {lbl}_done')
        e(f'v_mov_b32 {t(8)}, {4*D_CLR}')
        spin_poll(lbl, None, 256)
        e.label(f'{lbl}_done')
    cleared_check('L_clrA')
    e(f's_mul_i32 {sT0}, {sH}, {8*OSLOT}')
    e(f's_add_u32 {sT0}, {sT0}, {WS_O}')
    e(f's_mov_b32 {sSPIN}, 0')
    e.label('L_g1')
    e(f's_mov_b32 {sT1}, {sT0}')
    for w in range(8):
        e(f'buffer_load_dwordx4 v[{96+4*w}:{99+4*w}], v19, {WS_SRD}, {sT1} offen sc1')
        e(f'buffer_load_dwordx2 v[{20+2*w}:{21+2*w}], v18, {WS_SRD}, {sT1} offen offset:768 sc1')
        if w < 7: e(f's_add_u32 {sT1}, {sT1}, {OSLOT}')
    e('s_waitcnt vmcnt(0)')
    e('v_max3_u32 v36, v96, v97, v98')
    for r in range(99,127,2): e(f'v_max3_u32 v36, v36, v{r}, v{r+1}')
    e('v_max_u32 v36, v36, v127')
    for r in range(20,36,2): e(f'v_max3_u32 v36, v36, v{r}, v{r+1}')
    e('v_cmp_eq_u32 vcc, -1, v36')
    e('s_cbranch_vccz L_g1_ok')
    e(f's_add_u32 {sSPIN}, {sSPIN}, 1')
    e(f's_cmp_lt_u32 {sSPIN}, {cfg.SPIN}')
    e('s_cbranch_scc0 L_g1_ok')
    e('s_sleep 1')
    e('s_branch L_g1')
    e.label('L_g1_ok')
    stamp(9)
    e('v_max_f32 v36, v20, v22')
    for w in range(2,8): e(f'v_max_f32 v36, v36, v{20+2*w}')
    for w in range(8):
        e(f'v_sub_f32 v{20+2*w}, v{20+2*w}, v36')
        e(f'v_mul_f32 v{20+2*w}, {sT4}, v{20+2*w}')
        e(f'v_exp_f32 v{20+2*w}, v{20+2*w}')
    e('v_mul_f32 v37, v20, v21')
    for w in range(1,8): e(f'v_fmac_f32 v37, v{20+2*w}, v{21+2*w}')
    for x in range(4): e(f'v_mul_f32 v{40+x}, v20, v{96+x}')
    for w in range(1,8):
        for x in range(4): e(f'v_fmac_f32 v{40+x}, v{20+2*w}, v{96+4*w+x}')
    e('v_rcp_f32 v38, v37')
    for x in range(4):
        e(f'v_mul_f32 v44, v{40+x}, v38')
        e(f'v_fma_f32 v45, -v44, v37, v{40+x}')
        e(f'v_fma_f32 v{40+x}, v45, v38, v44')
    e('v_cvt_pk_bf16_f32 v44, v40, v41')
    e('v_cvt_pk_bf16_f32 v45, v42, v43')
    e('v_mul_u32_u24 v18, 384, v16')
    e('v_lshlrev_b32 v19, 3, v17')
    e('v_add_u32 v18, v18, v19')
    e(f'v_add_u32 v18, {L_O}, v18')
    e('ds_write_b64 v18, v[44:45]')
    e('s_waitcnt lgkmcnt(0)')
    e('s_branch L_b5')
    e.label('L_tail_hi')
    e(f's_cmp_lt_u32 {sJ}, 5')
    e('s_cbranch_scc1 L_b5w')
    e(f's_cmp_eq_u32 {sWAVE}, 3')
    e('s_cbranch_scc0 L_END2')
    e(f's_cmp_eq_u32 {sJ}, 7')
    e('s_cbranch_scc1 L_END2')
    e(f's_sub_u32 {sT0}, {sJ}, 5')
    e(f's_lshl_b32 {sT0}, {sT0}, 5')
    e(f's_add_u32 {sT0}, {sT0}, {sH}')
    e(f's_cmp_ge_u32 {sT0}, 40')
    e('s_cbranch_scc1 L_END2')
    e(f's_mul_i32 {sT1}, {sT0}, 205')
    e(f's_lshr_b32 {sT1}, {sT1}, 11')
    e(f's_mul_i32 {sT2}, {sT1}, 10')
    e(f's_sub_u32 {sT2}, {sT0}, {sT2}')
    e(f's_mov_b32 {sKR}, {sT1}')
    e(f's_mov_b32 {sFLAG}, {sT2}')
    cleared_check('L_clrB')
    e('s_mov_b32 s92, s44'); e('s_mov_b32 s93, s45'); e('s_mov_b32 s94, 5120'); e('s_mov_b32 s95, 0x20000')
    e(f's_mul_i32 {sT0}, {sKR}, 1280')
    e(f's_lshl_b32 {sT1}, {sFLAG}, 7')
    e(f's_add_u32 {sT0}, {sT0}, {sT1}')
    e(f's_mov_b32 {sOUT}, {sT0}')
    e(f'v_lshlrev_b32 v16, 1, {vLANE}')
    e(f'buffer_load_ushort v17, v16, s[92:95], {sOUT} offen')
    e(f'v_lshlrev_b32 v18, 2, {vLANE}')
    e(f's_mul_i32 {sT0}, {sKR}, 2560')
    e(f's_lshl_b32 {sT1}, {sFLAG}, 8')
    e(f's_add_u32 {sBSTR}, {sT0}, {sT1}')
    e(f's_mov_b32 {sSPIN}, 0')
    e.label('L_g2')
    e(f's_add_u32 {sT1}, {sBSTR}, {WS_S}')
    for hh in range(32):
        e(f'buffer_load_dword v{64+hh}, v18, {WS_SRD}, {sT1} offen sc1')
        if hh < 31: e(f's_add_u32 {sT1}, {sT1}, 10240')
    e(f's_add_u32 {sT1}, {sBSTR}, {WS_D}')
    for kr in range(3):
        e(f'buffer_load_dword v{96+kr}, v18, {WS_SRD}, {sT1} offen sc1')
        if kr < 2: e(f's_add_u32 {sT1}, {sT1}, 10240')
    e('s_waitcnt vmcnt(0)')
    e('v_max3_u32 v36, v64, v65, v66')
    for r in range(67,95,2): e(f'v_max3_u32 v36, v36, v{r}, v{r+1}')
    e('v_max3_u32 v36, v36, v95, v96')
    e('v_max3_u32 v36, v36, v97, v98')
    e('v_cmp_eq_u32 vcc, -1, v36')
    e('s_cbranch_vccz L_g2_ok')
    e(f's_add_u32 {sSPIN}, {sSPIN}, 1')
    e(f's_cmp_lt_u32 {sSPIN}, {cfg.SPIN}')
    e('s_cbranch_scc0 L_g2_ok')
    e('s_sleep 1')
    e('s_branch L_g2')
    e.label('L_g2_ok')
    stamp(9)
    for r in range(0,32,2): e(f'v_add_f32 v{64+r}, v{64+r}, v{65+r}')
    for r in range(0,32,4): e(f'v_add_f32 v{64+r}, v{64+r}, v{66+r}')
    for r in range(0,32,8): e(f'v_add_f32 v{64+r}, v{64+r}, v{68+r}')
    e('v_add_f32 v64, v64, v72'); e('v_add_f32 v80, v80, v88'); e('v_add_f32 v64, v64, v80')
    rne('v64','v64')
    e('v_add_f32 v96, v96, v97'); e('v_add_f32 v96, v96, v98')
    rne('v96','v96')
    e(f'v_mul_f32 v20, {H(-LOG2E)}, v96')
    e('v_exp_f32 v20, v20')
    e('v_add_f32 v20, 1.0, v20')
    e('v_rcp_f32 v21, v20')
    e('v_mul_f32 v22, v96, v21')
    e('v_fma_f32 v23, -v22, v20, v96')
    e('v_fma_f32 v23, v23, v21, v22')
    e('v_cmp_o_f32 vcc, v23, v23')
    e('v_cndmask_b32 v22, v22, v23, vcc')
    rne('v22','v22')
    e('v_mul_f32 v22, v64, v22')
    rne('v22','v22')
    e('v_lshlrev_b32 v17, 16, v17')
    e('v_add_f32 v22, v17, v22')
    e('v_cvt_pk_bf16_f32 v22, v22, v22')
    e(f's_mov_b32 s92, s{pOUT[0]}'); e(f's_mov_b32 s93, s{pOUT[1]}'); e('s_mov_b32 s94, 5120'); e('s_mov_b32 s95, 0x20000')
    e(f'buffer_store_short v22, v16, s[92:95], {sOUT} offen')
    e(f's_cmp_eq_u32 {sH}, 0')
    e('s_cbranch_scc0 L_END2')
    e(f's_cmp_eq_u32 {sJ}, 5')
    e('s_cbranch_scc0 L_END2')
    e(f's_add_u32 {sT0}, {sE0}, 1')
    e(f's_add_u32 {sT1}, {sE1}, 0x9e3779b9')
    e(f'v_mov_b32 v20, {sT0}')
    e(f'v_mov_b32 v21, {sT1}')
    e(f'v_mov_b32 v22, {WS_E}')
    e('s_mov_b64 exec, 1')
    e(f'global_store_dwordx2 v22, v[20:21], {pWS} sc1')
    e('s_mov_b64 exec, -1')
    e('s_branch L_END2')

    e.label('L_b5w')
    e('s_waitcnt lgkmcnt(0)')
    e.label('L_b5')
    e('s_barrier')
    e(f'v_and_b32 v16, 3, {vLANE}')
    e('v_mul_u32_u24 v16, 384, v16')
    e(f'v_lshrrev_b32 v17, 4, {vLANE}')
    e('v_lshlrev_b32 v17, 4, v17')
    e('v_add_u32 v16, v16, v17')
    e(f'v_add_u32 v16, {L_O}, v16')
    for k in range(6):
        e(f'ds_read_b128 v[{96+4*k}:{99+4*k}], v16 offset:{k*64}')
    for i in range(4): e(f'v_mov_b32 v{20+i}, 0')
    for k in range(6):
        e(f's_waitcnt lgkmcnt({5-k})')
        e(f'v_mfma_f32_16x16x32_bf16 v[20:23], v[{96+4*k}:{99+4*k}], v[{64+4*k}:{67+4*k}], v[20:23]')
    e(f's_mul_i32 {sT0}, {sH}, 10240')
    e(f's_lshl_b32 {sT1}, {sJ}, 9')
    e(f's_add_u32 {sT0}, {sT0}, {sT1}')
    e(f's_lshl_b32 {sT1}, {sWAVE}, 6')
    e(f's_add_u32 {sT0}, {sT0}, {sT1}')
    e(f's_add_u32 {sT0}, {sT0}, {WS_S}')
    e(f'v_lshlrev_b32 v24, 2, {vLANE}')
    e('s_mov_b64 exec, 0xffff')
    for i in range(4):
        e(f'buffer_store_dword v{20+i}, v24, {WS_SRD}, {sT0} offen sc1')
        if i < 3: e(f's_add_u32 {sT0}, {sT0}, 2560')
    e('s_mov_b64 exec, -1')
    e.label('L_END2')
    if cfg.TS:
        stamp(10)
        e(f's_lshl_b32 {sT0}, s2, 3')
        e(f's_add_u32 {sT0}, {sT0}, {sWAVE}')
        e(f's_lshl_b32 {sT0}, {sT0}, 7')
        e(f's_add_u32 {sT0}, {sT0}, {WS_TS}')
        e('s_mov_b64 exec, 1')
        e('v_mov_b32 v16, 0')
        e(f'v_mov_b32 v24, {sNST}')
        e('v_mov_b32 v25, s79')
        e(f'buffer_store_dwordx2 v[24:25], v16, {WS_SRD}, {sT0} offen offset:48')
        e('v_mov_b32 v28, s76'); e('v_mov_b32 v29, s77'); e('v_mov_b32 v30, s78'); e('v_mov_b32 v31, 0')
        e(f'buffer_store_dwordx4 v[28:31], v16, {WS_SRD}, {sT0} offen offset:64')
        for k in range(0,12,4):
            for x in range(4): e(f'v_mov_b32 v{20+x}, s{sTSB+k+x}')
            e(f'buffer_store_dwordx4 v[20:23], v16, {WS_SRD}, {sT0} offen offset:{k*4}')
            e('s_nop 2')
    e('s_waitcnt vmcnt(0)')
    e.label('L_END')
    e('s_endpgm')

    body = hazard_pass([l for l in e.lines if l])
    return body, NV

HEADER = open('recurrent_scan__mha_block_cached__geglu_ffn__decode.s.ref').read().split('; Override launch geometry')[0]

def build(cfg):
    body, NV = gen(cfg)
    NV = getattr(cfg,'NVF',0) or NV
    out = [HEADER.rstrip('\n')]
    out.append('; Override launch geometry by editing the next line (default: block=256,')
    out.append(f'; @launch grid=(256,1,1) block=(512,1,1) lds={getattr(cfg,"LDS",0) or L_END}')
    out.append('.amdgcn_target "amdgcn-amd-amdhsa--gfx950"')
    out.append('.text')
    out.append(f'.globl {KNAME}')
    out.append('.p2align 8')
    out.append(f'.type {KNAME},@function')
    for l in body:
        out.append(l if l.endswith(':') else '    ' + l)
    out.append('.section .rodata,"a"')
    out.append('.p2align 6')
    out.append(f'.amdhsa_kernel {KNAME}')
    out.append(f'  .amdhsa_next_free_vgpr {NV}')
    out.append('  .amdhsa_next_free_sgpr 102')
    out.append(f'  .amdhsa_accum_offset {(NV+3)//4*4}')
    out.append('  .amdhsa_group_segment_fixed_size 0')
    out.append('  .amdhsa_kernarg_size 96')
    out.append('  .amdhsa_user_sgpr_count 2')
    out.append('  .amdhsa_user_sgpr_kernarg_segment_ptr 1')
    out.append('  .amdhsa_system_sgpr_workgroup_id_x 1')
    out.append('.end_amdhsa_kernel')
    return '\n'.join(out) + '\n'

if __name__ == '__main__':
    ap = argparse.ArgumentParser()
    ap.add_argument('-o', default='out.s')
    ap.add_argument('--ns', type=int, default=4)
    ap.add_argument('--ts', action='store_true')
    ap.add_argument('--strip', type=int, default=0)
    ap.add_argument('--nopro', action='store_true')
    ap.add_argument('--lds', type=int, default=0)
    ap.add_argument('--nv', type=int, default=0)
    a = ap.parse_args()
    cfg = Cfg(); cfg.NS = a.ns; cfg.TS = a.ts; cfg.STRIP = a.strip; cfg.NOPRO = a.nopro; cfg.NOTAIL = a.nopro; cfg.LDS = a.lds; cfg.NVF = a.nv
    open(a.o, 'w').write(build(cfg))
```

```python
import sys, struct, argparse
from emit import Emitter, hazard_pass

def f2u(x): return struct.unpack('<I', struct.pack('<f', x))[0]
def H(x): return hex(f2u(x))

KNAME = 'recurrent_scan__mha_block_cached__geglu_ffn__decode_kernel'

class Cfg:
    NS = 4
    TS = False
    SPIN = 40000
    POL = 'nt'
    WPOL = 'nt'
    STRIP = 0
    NOPRO = False
    G = 1
    NB = 0
    LIGHT = True
    NOQ = False
    QLIGHT = False
    TLIGHT = False
    LATEWAIT = True
    PT = False
    NBT = 0
    NOROLE = False
    NOWO = False
    NOCLR = False
    SLP = 4
    NOTAIL = False

WS_CNT = 0
WS_Q   = 8192
WS_F1  = WS_Q + 32*3072
WS_O   = WS_F1 + 48*1024
OSLOT  = 3200; OB = 800
WS_S   = WS_O + 256*OSLOT
WS_D   = WS_S + 32*10240
WS_TS  = WS_D + 3*10240
WS_TS2 = WS_TS + 2048*128
WS_USED = 4*1024*1024
WS_E = WS_USED - 256
L_W2 = 32768
L_W  = 0
L_WO = 81920
L_XN = 131072
XS = 1312
HS = 1056
OS = 416
L_Q  = L_XN + 4*XS
L_O  = L_Q + 1536
L_END = L_O + 4*OS
SLOT = 784
D_Q = 0; D_F1 = 32; D_CLR = 48; D_DUMMY = 60
KBYTES = 402653184
LOG2E = 1.4426950408889634
SCALE = 192 ** -0.5
NEG = -1.0e30
SENT = 0xFFFFFFFF

sWAVE='s3'; sH='s4'; sJ='s5'; sROLE='s6'; sTMP='s7'
K_SRD='s[8:11]'; V_SRD='s[12:15]'; WS_SRD='s[16:19]'; W_SRD='s[20:23]'
sSTRIDE='s24'; sWOFF='s25'; sOUT='s26'; sBSTR='s27'; sFLAG='s28'; sKR='s29'
sHBASE='s30'; sCURB='s31'; sOFF='s32'; sT0='s33'; sT1='s34'; sT2='s35'; sSPIN='s36'; sNST='s37'
sEX='s[38:39]'; sT3='s40'; sT4='s41'
pX='s[44:45]'; pK=(46,47); pV=(48,49); pWQ=(50,51); pWO=(52,53); pWG=(56,57); pWU=(58,59); pWD=(60,61); pOUT=(62,63)
pDBG='s[64:65]'; pWS='s[66:67]'
sE0='s68'; sE1='s69'; sTAG0='s42'; sTAG1='s43'
def sT(s): return f's{70+s}'
sTSB = 80
vLANE='v1'; vKV='v2'; vCNT='v3'; vONE='v4'
vFL='v14'; vQA='v15'
Q0=16; ACC=28; vM='v52'; vL='v53'
T0=54
RING=64

def gen(cfg):
    e = Emitter()
    NS = cfg.NS
    POL = cfg.POL; WPOL = cfg.WPOL
    NV = RING + 24*NS*(1+cfg.NB) + (24*cfg.NBT if cfg.PT else 0)
    NV = max(NV, 160)
    NB = cfg.NB
    def kreg(s,i,st=0): return RING + (st*NS + s)*24 + i*4
    def vreg(s,i,st=0): return RING + (st*NS + s)*24 + 12 + i*4
    def t(i): return f'v{T0+i}'
    tsn = [0]
    def stamp(k):
        if cfg.TS == 2 or (cfg.TS == 1 and k in (0, 10, 6)):
            e(f's_memrealtime s[96:97]')
            e('s_waitcnt lgkmcnt(0)')
            e(f's_mov_b32 s{sTSB+k}, s96')
    def wave_red(v, tmp, op):
        for d in ('quad_perm:[1,0,3,2]','quad_perm:[2,3,0,1]','row_half_mirror','row_mirror'):
            e(f'{op}_dpp {v}, {v}, {v} {d} row_mask:0xf bank_mask:0xf')
        e(f'v_mov_b32 {tmp}, {v}')
        e(f'v_permlane16_swap_b32 {v}, {tmp}')
        e(f'{op} {v}, {v}, {tmp}')
        e(f'v_mov_b32 {tmp}, {v}')
        e(f'v_permlane32_swap_b32 {v}, {tmp}')
        e(f'{op} {v}, {v}, {tmp}')
    def rne(dst, src):
        e(f'v_cvt_pk_bf16_f32 {dst}, {src}, {src}')
        e(f'v_and_b32 {dst}, 0xffff0000, {dst}')
    def spin_poll(lbl, vaddr_off_dword, expect, cmp='eq'):
        e(f's_mov_b32 {sSPIN}, 0')
        e.label(lbl)
        e(f'global_load_dword {t(9)}, {t(8)}, {pDBG} sc1')
        e('s_waitcnt vmcnt(0)')
        e(f'v_readfirstlane_b32 {sT0}, {t(9)}')
        e(f's_cmp_eq_u32 {sT0}, {expect}')
        e(f's_cbranch_scc1 {lbl}_ok')
        e(f's_add_u32 {sSPIN}, {sSPIN}, 1')
        e(f's_cmp_lt_u32 {sSPIN}, {cfg.SPIN}')
        e(f's_cbranch_scc0 {lbl}_ok')
        e('s_sleep 2')
        e(f's_branch {lbl}')
        e.label(f'{lbl}_ok')

    CPB = 1024 // NS
    LCPB = CPB.bit_length() - 1
    assert cfg.PT or (1 << LCPB) == CPB
    TOTC = 4 * CPB
    sCUR = sT(0); sNXT = sT(1)
    def vKVs(s): return f'v{5+s}'
    vTK = 'v13'
    def chunk_to_off(st):
        e(f's_lshr_b32 {sT1}, {st}, {LCPB}')
        e(f's_and_b32 {sT2}, {st}, {CPB-1}')
        e(f's_mul_i32 {sT1}, {sT1}, {32*8192*384}')
        if cfg.G == 1:
            e(f's_mul_i32 {sT2}, {sT2}, {3072*NS}')
        else:
            lg = cfg.G.bit_length()-1
            e(f's_lshr_b32 {sOFF}, {sT2}, {lg}')
            e(f's_mul_i32 {sOFF}, {sOFF}, {3072*NS*cfg.G}')
            e(f's_and_b32 {sT2}, {sT2}, {cfg.G-1}')
            e(f's_mul_i32 {sT2}, {sT2}, 3072')
            e(f's_add_u32 {sT2}, {sT2}, {sOFF}')
        e(f's_add_u32 {sOFF}, {sT1}, {sT2}')
        e(f's_add_u32 {sOFF}, {sOFF}, {sHBASE}')
        e(f's_cmp_lt_u32 {st}, {TOTC}')
        e(f's_cselect_b32 {sOFF}, {sOFF}, 0')
        e(f's_cselect_b32 s10, s10, 0')
        e(f's_cselect_b32 s14, s14, 0')
    def issueK(s, st=0):
        for i in range(3):
            b = kreg(s,i,st)
            e(f'buffer_load_dwordx4 v[{b}:{b+3}], {vKVs(s)}, {K_SRD}, {sOFF} offen offset:{i*128} {POL}')
    def issueV(s, st=0):
        for i in range(3):
            b = vreg(s,i,st)
            e(f'buffer_load_dwordx4 v[{b}:{b+3}], {vKVs(s)}, {V_SRD}, {sOFF} offen offset:{i*128} {POL}')
    NSTAT = NB + 2
    NPRE = 6*NS*(1+NB) if not cfg.PT else 6*(NS+cfg.NBT)
    def tile_to_off(st):
        e(f's_lshr_b32 {sT1}, {st}, 10')
        e(f's_and_b32 {sT2}, {st}, 1023')
        e(f's_mul_i32 {sT1}, {sT1}, {32*8192*384}')
        e(f's_mul_i32 {sT2}, {sT2}, 3072')
        e(f's_add_u32 {sOFF}, {sT1}, {sT2}')
        e(f's_add_u32 {sOFF}, {sOFF}, {sHBASE}')
        e(f's_cmp_lt_u32 {st}, 4096')
        e(f's_cselect_b32 {sOFF}, {sOFF}, 0')
        e(f's_cselect_b32 s10, s10, 0')
        e(f's_cselect_b32 s14, s14, 0')
    def sTP(s): return f's{70+s}'
    def vTKP(s): return f'v{5 + s}'
    NBT = cfg.NBT
    PTOFF = 64*(2*NS + NBT)
    def sk(u,i): return RING + (NS+u)*24 + i*4
    def sv(u,i): return RING + (NS+u)*24 + 12 + i*4
    def kv_prefetch_pt():
        e(f's_lshl_b32 {sT0}, {sJ}, 3')
        e(f's_add_u32 {sT0}, {sT0}, {sWAVE}')
        for s in range(NS):
            e(f's_add_u32 {sTP(s)}, {sT0}, {64*s}')
            tile_to_off(sTP(s))
            issueKp(s)
            issueVp(s)
            e(f's_add_u32 {sT1}, {sT0}, {(64*(NS+NBT+s) - PTOFF) & 0xffffffff}')
            e(f'v_mov_b32 {vTKP(s)}, {sT1}')
        for u in range(NBT):
            e(f's_add_u32 {sNXT}, {sT0}, {64*(NS+u)}') if False else None
            e(f's_add_u32 s76, {sT0}, {64*(NS+u)}')
            tile_to_off('s76')
            for i in range(3):
                b_ = sk(u,i)
                e(f'buffer_load_dwordx4 v[{b_}:{b_+3}], {vKV}, {K_SRD}, {sOFF} offen offset:{i*128} {POL}')
            for i in range(3):
                b_ = sv(u,i)
                e(f'buffer_load_dwordx4 v[{b_}:{b_+3}], {vKV}, {V_SRD}, {sOFF} offen offset:{i*128} {POL}')
    def issueKp(s):
        for i in range(3):
            b = kreg(s,i)
            e(f'buffer_load_dwordx4 v[{b}:{b+3}], {vKV}, {K_SRD}, {sOFF} offen offset:{i*128} {POL}')
    def issueVp(s):
        for i in range(3):
            b = vreg(s,i)
            e(f'buffer_load_dwordx4 v[{b}:{b+3}], {vKV}, {V_SRD}, {sOFF} offen offset:{i*128} {POL}')
    def kv_prefetch():
        if cfg.PT: return kv_prefetch_pt()
        e(f's_lshl_b32 {sCUR}, {sJ}, 3')
        e(f's_add_u32 {sCUR}, {sCUR}, {sWAVE}')
        for st in range(NB+1):
            e(f's_add_u32 {sNXT}, {sCUR}, {64*st}')
            chunk_to_off(sNXT)
            for s in range(NS):
                issueK(s, st)
                issueV(s, st)
        e(f's_add_u32 {sT1}, {sCUR}, {(64*(NB+1) - 64*NSTAT) & 0xffffffff}')
        e(f'v_mov_b32 {vTK}, {sT1}')

    e.label(KNAME)
    e('s_cmp_ge_u32 s2, 256')
    e('s_cbranch_scc1 L_END')
    e('s_load_dwordx16 s[44:59], s[0:1], 0')
    e('s_load_dwordx8 s[60:67], s[0:1], 64')
    stamp(0)
    e(f'v_and_b32 {vLANE}, 63, v0')
    e(f'v_lshrrev_b32 {t(0)}, 6, v0')
    e(f'v_readfirstlane_b32 {sWAVE}, {t(0)}')
    e(f's_lshr_b32 {sH}, s2, 3')
    e(f's_and_b32 {sJ}, s2, 7')
    e(f'v_lshrrev_b32 {t(0)}, 3, {vLANE}')
    e(f'v_mul_u32_u24 {vKV}, 384, {t(0)}')
    e(f'v_and_b32 {t(1)}, 7, {vLANE}')
    e(f'v_lshlrev_b32 {t(2)}, 4, {t(1)}')
    e(f'v_add_u32 {vKV}, {vKV}, {t(2)}')
    if not cfg.PT:
        for sl in range(NS): e(f'v_add_u32 {vKVs(sl)}, {3072*sl*cfg.G}, {vKV}')
    e(f'v_lshlrev_b32 {vFL}, 3, {t(1)}')
    e(f'v_add_u32 {vFL}, {vFL}, {t(0)}')
    e(f'v_lshlrev_b32 {vFL}, 2, {vFL}')
    e(f'v_add_u32 {vQA}, {L_Q}, {t(2)}')
    e(f'v_mov_b32 {vONE}, 1')
    e(f's_lshl_b32 {sT0}, {sH}, 8')
    e(f's_add_u32 {sT0}, {sT0}, {WS_CNT}')
    e(f'v_mov_b32 {vCNT}, {sT0}')
    e(f's_mul_i32 {sHBASE}, {sH}, {8192*384}')
    e(f's_mov_b32 {sROLE}, 0')
    e('s_waitcnt lgkmcnt(0)')
    e(f's_mov_b32 s8, s{pK[0]}');  e(f's_mov_b32 s9, s{pK[1]}');  e(f's_mov_b32 s10, {KBYTES}'); e('s_mov_b32 s11, 0x20000')
    e(f's_mov_b32 s12, s{pV[0]}'); e(f's_mov_b32 s13, s{pV[1]}'); e(f's_mov_b32 s14, {KBYTES}'); e('s_mov_b32 s15, 0x20000')
    e('s_mov_b32 s16, s66'); e('s_mov_b32 s17, s67'); e(f's_mov_b32 s18, {WS_USED}'); e('s_mov_b32 s19, 0x20000')
    e(f's_mov_b32 s20, s{pWQ[0]}'); e(f's_mov_b32 s21, s{pWQ[1]}'); e(f's_mov_b32 s22, {640*12288}'); e('s_mov_b32 s23, 0x20000')
    e(f's_mov_b32 {sSTRIDE}, 12288'); e(f's_mov_b32 {sWOFF}, 0'); e(f's_mov_b32 {sOUT}, 0'); e(f's_mov_b32 {sBSTR}, 0'); e(f's_mov_b32 {sFLAG}, 0'); e(f's_mov_b32 {sKR}, 0')
    e(f's_cmp_lt_u32 {sJ}, 3')
    e('s_cbranch_scc1 L_roleA')
    e(f's_cmp_eq_u32 {sJ}, 3')
    e('s_cbranch_scc1 L_roleB3')
    e(f's_cmp_eq_u32 {sJ}, 4')
    e('s_cbranch_scc1 L_roleB4')
    e(f's_cmp_eq_u32 {sJ}, 7')
    e('s_cbranch_scc1 L_roledone')
    e(f's_cmp_lt_u32 {sH}, 16')
    e('s_cbranch_scc1 L_roledone')
    e(f's_sub_u32 {sT0}, {sH}, 16')
    e(f's_lshl_b32 {sT0}, {sT0}, 1')
    e(f's_add_u32 {sT0}, {sT0}, {sJ}')
    e(f's_sub_u32 {sT0}, {sT0}, 5')
    e(f's_cmp_ge_u32 {sT0}, 30')
    e('s_cbranch_scc1 L_roledone')
    e(f's_mov_b32 {sROLE}, 2')
    e(f's_cmp_ge_u32 {sT0}, 10'); e(f's_cselect_b32 {sKR}, 1, 0')
    e(f's_cmp_ge_u32 {sT0}, 20'); e(f's_cselect_b32 {sKR}, 2, {sKR}')
    e(f's_mul_i32 {sT1}, {sKR}, 10')
    e(f's_sub_u32 {sT0}, {sT0}, {sT1}')
    e(f's_mov_b32 s20, s{pWD[0]}'); e(f's_mov_b32 s21, s{pWD[1]}'); e(f's_mov_b32 s22, {1536*1280}')
    e(f's_mov_b32 {sSTRIDE}, 1280')
    e(f's_mul_i32 {sWOFF}, {sKR}, {512*1280}')
    e(f's_lshl_b32 {sT1}, {sT0}, 7')
    e(f's_add_u32 {sWOFF}, {sWOFF}, {sT1}')
    e(f's_mul_i32 {sOUT}, {sKR}, 10240')
    e(f's_lshl_b32 {sT1}, {sT0}, 8')
    e(f's_add_u32 {sOUT}, {sOUT}, {sT1}')
    e(f's_add_u32 {sOUT}, {sOUT}, {WS_D}')
    e(f's_mov_b32 {sBSTR}, 2560')
    e('s_branch L_roledone')
    e.label('L_roleA')
    e(f's_mov_b32 {sROLE}, 1')
    e(f's_mul_i32 {sWOFF}, {sH}, 384')
    e(f's_lshl_b32 {sT1}, {sJ}, 7')
    e(f's_add_u32 {sWOFF}, {sWOFF}, {sT1}')
    e(f's_mul_i32 {sOUT}, {sH}, 3072')
    e(f's_lshl_b32 {sT1}, {sJ}, 10')
    e(f's_add_u32 {sOUT}, {sOUT}, {sT1}')
    e(f's_add_u32 {sOUT}, {sOUT}, {WS_Q}')
    e(f's_mov_b32 {sBSTR}, 768')
    e(f's_add_u32 {sFLAG}, {sH}, {D_Q}')
    e('s_branch L_roledone')
    e.label('L_roleB4')
    e(f's_cmp_ge_u32 {sH}, 16')
    e('s_cbranch_scc1 L_roledone')
    e(f's_add_u32 {sT0}, {sH}, 32')
    e('s_branch L_roleB')
    e.label('L_roleB3')
    e(f's_mov_b32 {sT0}, {sH}')
    e.label('L_roleB')
    e(f's_mov_b32 {sROLE}, 1')
    e(f's_lshl_b32 {sOUT}, {sT0}, 10')
    e(f's_add_u32 {sOUT}, {sOUT}, {WS_F1}')
    e(f's_mov_b32 {sBSTR}, 256')
    e(f's_cmp_lt_u32 {sT0}, 24')
    e(f's_cselect_b32 s20, s{pWG[0]}, s{pWU[0]}')
    e(f's_cselect_b32 s21, s{pWG[1]}, s{pWU[1]}')
    e(f's_cselect_b32 {sT1}, 0, 24')
    e(f's_sub_u32 {sT0}, {sT0}, {sT1}')
    e(f's_mov_b32 s22, {640*3072}')
    e(f's_mov_b32 {sSTRIDE}, 3072')
    e(f's_lshl_b32 {sWOFF}, {sT0}, 7')
    e(f's_lshr_b32 {sFLAG}, {sT0}, 3')
    e(f's_add_u32 {sFLAG}, {sFLAG}, {D_F1}')
    e.label('L_roledone')
    if cfg.NOROLE: e(f's_mov_b32 {sROLE}, 0')
    stamp(1)

    RT = RING
    def dma_rows(n, rows_per_wave_expr_sgpr, lds_base):
        e(f'v_lshrrev_b32 {t(0)}, 3, {vLANE}')
        e(f'v_mul_lo_u32 {t(2)}, {t(0)}, {sSTRIDE}')
        e(f'v_and_b32 {t(1)}, 7, {vLANE}')
        e(f'v_and_b32 {t(0)}, 2, {t(0)}')
        e(f'v_xor_b32 {t(1)}, {t(1)}, {t(0)}')
        e(f'v_xor_b32 {t(3)}, 4, {t(1)}')
        e(f'v_lshlrev_b32 {t(1)}, 4, {t(1)}')
        e(f'v_lshlrev_b32 {t(3)}, 4, {t(3)}')
        e(f'v_add_u32 {t(0)}, {t(2)}, {t(1)}')
        e(f'v_add_u32 {t(1)}, {t(2)}, {t(3)}')
        e(f's_mul_i32 {sT1}, {sT0}, {sSTRIDE}')
        e(f's_add_u32 {sT1}, {sT1}, {sWOFF}')
        e(f's_lshl_b32 {sT0}, {sT0}, 7')
        e(f's_add_u32 {sT0}, {sT0}, {lds_base}')
        e(f's_lshl_b32 {sT2}, {sSTRIDE}, 3')
        for i in range(n):
            e(f's_mov_b32 m0, {sT0}')
            e(f'buffer_load_dwordx4 {t(i & 1)}, {W_SRD}, {sT1} offen {WPOL} lds')
            if i < n-1:
                e(f's_add_u32 {sT0}, {sT0}, 1024')
                e(f's_add_u32 {sT1}, {sT1}, {sT2}')
    def make_tags():
        e(f's_add_u32 {sTAG0}, {sE0}, 1')
        e(f's_not_b32 {sTAG1}, {sE1}')

    if cfg.NOPRO:
        kv_prefetch()
        e('s_branch L_pre_b3')
    e(f's_mov_b32 {sT0}, {WS_E}')
    e(f's_load_dwordx2 s[68:69], {pWS}, {sT0}')
    e(f's_cmp_ge_u32 {sWAVE}, 4')
    e('s_cbranch_scc1 L_hi_waves')
    e(f's_cmp_eq_u32 {sWAVE}, 0')
    e('s_cbranch_scc0 L_noprio')
    e('s_setprio 3')
    e(f's_cmp_eq_u32 {sJ}, 0')
    e('s_cbranch_scc0 L_noprio')
    e('v_mov_b32 v18, 0')
    e('s_mov_b64 exec, 1')
    e(f'global_store_dword {vCNT}, v18, {pWS} sc1')
    e('s_mov_b64 exec, -1')
    e.label('L_noprio')
    e(f's_cmp_eq_u32 {sROLE}, 1')
    e('s_cbranch_scc0 L_lo_not1')
    e('s_mov_b32 s92, s44'); e('s_mov_b32 s93, s45'); e('s_mov_b32 s94, 5120'); e('s_mov_b32 s95, 0x20000')
    e(f's_mul_i32 {sT0}, {sWAVE}, 1280')
    e(f'v_lshlrev_b32 {t(8)}, 2, {vLANE}')
    X0 = 16
    for i in range(5):
        e(f'buffer_load_dword v{X0+i}, {t(8)}, s[92:95], {sT0} offen offset:{i*256}')
    e(f's_mul_i32 {sT0}, {sWAVE}, 160')
    dma_rows(20, None, L_W)
    e('s_waitcnt vmcnt(20)')
    U0 = 24
    for i in range(5):
        e(f'v_lshlrev_b32 v{U0+2*i}, 16, v{X0+i}')
        e(f'v_and_b32 v{U0+2*i+1}, 0xffff0000, v{X0+i}')
    sm = 'v36'; tm = 'v37'; mean = 'v38'; var = 'v39'; den = 'v40'; rc = 'v41'
    e(f'v_add_f32 {sm}, v{U0}, v{U0+1}')
    for i in range(2,10): e(f'v_add_f32 {sm}, {sm}, v{U0+i}')
    wave_red(sm, tm, 'v_add_f32')
    e(f'v_mul_f32 {mean}, {H(1.0/640)}, {sm}')
    e(f'v_sub_f32 v42, v{U0}, {mean}')
    e(f'v_mul_f32 {var}, v42, v42')
    for i in range(1,10):
        e(f'v_sub_f32 v42, v{U0+i}, {mean}')
        e(f'v_fmac_f32 {var}, v42, v42')
    wave_red(var, tm, 'v_add_f32')
    e(f'v_mul_f32 {var}, {H(1.0/640)}, {var}')
    rne(mean, mean)
    rne(var, var)
    e(f'v_add_f32 {var}, {H(1e-5)}, {var}')
    rne(var, var)
    e(f'v_sqrt_f32 {den}, {var}')
    rne(den, den)
    e(f'v_rcp_f32 {rc}, {den}')
    e(f's_mul_i32 {sT0}, {sWAVE}, {XS}')
    e(f's_add_u32 {sT0}, {sT0}, {L_XN}')
    e(f'v_add_u32 {t(8)}, {sT0}, {t(8)}')
    for i in range(5):
        a = f'v{U0+2*i}'; b = f'v{U0+2*i+1}'
        e(f'v_sub_f32 {a}, {a}, {mean}')
        e(f'v_sub_f32 {b}, {b}, {mean}')
        e(f'v_cvt_pk_bf16_f32 v42, {a}, {b}')
        e(f'v_lshlrev_b32 {a}, 16, v42')
        e(f'v_and_b32 {b}, 0xffff0000, v42')
        for x in (a, b):
            e(f'v_mul_f32 v43, {x}, {rc}')
            e(f'v_fma_f32 v44, -v43, {den}, {x}')
            e(f'v_fma_f32 {x}, v44, {rc}, v43')
        e(f'v_cvt_pk_bf16_f32 v42, {a}, {b}')
        e(f'ds_write_b32 {t(8)}, v42 offset:{i*256}')
    stamp(11)
    e('s_waitcnt vmcnt(0) lgkmcnt(0)')
    e('s_barrier')
    stamp(2)
    make_tags()
    vB='v16'; vB2='v17'; vA='v18'; D=20
    def frag_addr(ldsW, ldsX, rowbytes):
        e(f'v_lshrrev_b32 v24, 4, {vLANE}')
        e(f'v_and_b32 v25, 15, {vLANE}')
        e(f'v_lshrrev_b32 v26, 2, v25')
        e(f'v_and_b32 v27, 3, v25')
        e(f'v_lshlrev_b32 {vB}, 3, v24')
        e(f'v_add_u32 {vB}, {vB}, v26')
        e(f'v_lshlrev_b32 {vB}, 7, {vB}')
        e(f'v_lshlrev_b32 v27, 3, v27')
        e(f'v_add_u32 {vB}, {vB}, v27')
        e(f'v_add_u32 {vB}, {ldsW}, {vB}')
        e(f'v_lshrrev_b32 v26, 1, v26')
        e(f'v_and_b32 v19, 1, v24')
        e(f'v_lshlrev_b32 v19, 1, v19')
        e(f'v_or_b32 v19, v19, v26')
        e(f'v_and_b32 v26, 3, {vLANE}')
        e(f'v_mul_u32_u24 {vA}, {rowbytes}, v26')
        e(f'v_lshlrev_b32 v24, 4, v24')
        e(f'v_add_u32 {vA}, {vA}, v24')
        e(f'v_add_u32 {vA}, {ldsX}, {vA}')
    def frag_tile(dst, tile):
        e(f'v_xor_b32 v27, {tile}, v19')
        e(f'v_lshlrev_b32 v27, 5, v27')
        e(f'v_add_u32 {dst}, v27, {vB}')
    frag_addr(L_W, L_XN, XS)
    frag_tile(vB, sWAVE)
    e(f'v_add_u32 {vB2}, 0x10000, {vB}')
    for i in range(4): e(f'v_mov_b32 v{D+i}, 0')
    step = 0
    while step < 20:
        nb = 5
        for k in range(nb):
            tt = step+k
            base = vB if tt < 16 else vB2
            off = (tt % 16)*4096
            r = RT + k*8
            e(f'ds_read_b64_tr_b16 v[{r}:{r+1}], {base} offset:{off}')
            e(f'ds_read_b64_tr_b16 v[{r+2}:{r+3}], {base} offset:{off+512}')
            e(f'ds_read_b128 v[{r+4}:{r+7}], {vA} offset:{tt*64}')
        for k in range(nb):
            r = RT + k*8
            e(f's_waitcnt lgkmcnt({3*(nb-1-k)})')
            e(f'v_mfma_f32_16x16x32_bf16 v[{D}:{D+3}], v[{r+4}:{r+7}], v[{r}:{r+3}], v[{D}:{D+3}]')
        step += nb
    e(f'v_mov_b32 v26, {sTAG0}')
    e(f'v_mov_b32 v27, {sTAG1}')
    e(f'v_lshlrev_b32 v28, 4, {vLANE}')
    e(f's_lshl_b32 {sT0}, {sWAVE}, 8')
    e(f's_add_u32 {sT0}, {sT0}, {sOUT}')
    e(f'v_cvt_pk_bf16_f32 v24, v{D}, v{D+1}')
    e(f'v_cvt_pk_bf16_f32 v25, v{D+2}, v{D+3}')
    e('s_mov_b64 exec, 0xffff')
    e(f'buffer_store_dwordx4 v[24:27], v28, {WS_SRD}, {sT0} offen sc1')
    e('s_mov_b64 exec, -1')
    stamp(3)
    e(f's_cmp_eq_u32 {sWAVE}, 0')
    e('s_cbranch_scc1 L_w0_q')
    e('s_branch L_lo_pref')

    e.label('L_lo_not1')
    e(f's_cmp_eq_u32 {sWAVE}, 0')
    e('s_cbranch_scc1 L_w0_q')
    e(f's_cmp_eq_u32 {sROLE}, 2')
    e('s_cbranch_scc0 L_lo_pref')
    e(f's_cmp_eq_u32 {sWAVE}, 1')
    e('s_cbranch_scc0 L_lo_pref')
    e('v_mov_b32 v20, -1')
    e(f'v_lshlrev_b32 v16, 2, {vLANE}')
    e(f's_mov_b32 {sT0}, {sOUT}')
    for b in range(4):
        e(f'buffer_store_dword v20, v16, {WS_SRD}, {sT0} offen sc1')
        if b < 3: e(f's_add_u32 {sT0}, {sT0}, 2560')
    e(f's_mov_b32 {sT0}, 0')
    dma_rows(64, None, L_W2)
    e('s_branch L_pre_b3')
    e.label('L_lo_pref')
    kv_prefetch()
    e('s_branch L_pre_b3')

    e.label('L_w0_q')
    e('s_waitcnt lgkmcnt(0)')
    make_tags()
    e(f'v_lshlrev_b32 v16, 4, {vLANE}')
    e(f's_mul_i32 {sT0}, {sH}, 3072')
    e(f's_add_u32 {sT0}, {sT0}, {WS_Q}')
    e(f's_mov_b32 {sSPIN}, 0')
    if cfg.NOQ: e('s_branch L_qpoll_ok')
    if cfg.QLIGHT:
        e(f'v_lshlrev_b32 v17, 8, {vLANE}')
        e('v_add_u32 v17, 240, v17')
        e.label('L_qlight')
        e('s_mov_b64 exec, 0xfff')
        e(f'buffer_load_dwordx2 v[32:33], v17, {WS_SRD}, {sT0} offen offset:8 sc1')
        e('s_waitcnt vmcnt(0)')
        e(f'v_xor_b32 v32, {sTAG0}, v32')
        e(f'v_xor_b32 v33, {sTAG1}, v33')
        e('v_or_b32 v32, v32, v33')
        e('v_cmp_ne_u32 vcc, 0, v32')
        e('s_mov_b64 exec, -1')
        e('s_cbranch_vccz L_qpoll')
        e(f's_add_u32 {sSPIN}, {sSPIN}, 1')
        e(f's_cmp_lt_u32 {sSPIN}, {cfg.SPIN}')
        e('s_cbranch_scc0 L_qpoll')
        e(f's_sleep {cfg.SLP}')
        e('s_branch L_qlight')
    e.label('L_qpoll')
    for i in range(3):
        e(f'buffer_load_dwordx4 v[{20+4*i}:{23+4*i}], v16, {WS_SRD}, {sT0} offen offset:{i*1024} sc1')
    e('s_waitcnt vmcnt(0)')
    e(f'v_xor_b32 v32, {sTAG0}, v22')
    e(f'v_xor_b32 v33, {sTAG1}, v23')
    e('v_or_b32 v32, v32, v33')
    for i in range(1,3):
        e(f'v_xor_b32 v33, {sTAG0}, v{22+4*i}')
        e('v_or_b32 v32, v32, v33')
        e(f'v_xor_b32 v33, {sTAG1}, v{23+4*i}')
        e('v_or_b32 v32, v32, v33')
    e('v_cmp_ne_u32 vcc, 0, v32')
    e('s_cbranch_vccz L_qpoll_ok')
    e(f's_add_u32 {sSPIN}, {sSPIN}, 1')
    e(f's_cmp_lt_u32 {sSPIN}, {cfg.SPIN}')
    e('s_cbranch_scc0 L_qpoll_ok')
    e('s_sleep 1')
    e('s_branch L_qpoll')
    e.label('L_qpoll_ok')
    stamp(4)
    e(f'v_lshlrev_b32 v17, 1, {vLANE}')
    e(f'v_add_u32 v17, {L_Q}, v17')
    for i in range(3):
        e(f'ds_write_b16 v17, v{20+4*i} offset:{i*128}')
        e(f'ds_write_b16_d16_hi v17, v{20+4*i} offset:{i*128+384}')
        e(f'ds_write_b16 v17, v{21+4*i} offset:{i*128+768}')
        e(f'ds_write_b16_d16_hi v17, v{21+4*i} offset:{i*128+1152}')
    e('s_waitcnt lgkmcnt(0)')
    e('s_barrier')
    e('s_setprio 0')
    kv_prefetch()
    e('s_branch L_post_b3')

    e.label('L_hi_waves')
    e(f'v_subrev_u32 v16, 256, v0')
    for i in range(4): e(f'v_mov_b32 v{20+i}, -1')
    e(f'v_lshlrev_b32 v17, 4, v16')
    e(f's_lshl_b32 {sT0}, {sH}, 3')
    e(f's_add_u32 {sT0}, {sT0}, {sJ}')
    e(f's_mul_i32 {sT0}, {sT0}, {OSLOT}')
    e(f's_add_u32 {sT0}, {sT0}, {WS_O}')
    e('v_cmp_gt_u32 vcc, 200, v16')
    e(f's_and_saveexec_b64 {sEX}, vcc')
    e('s_cbranch_execz L_clr1')
    e(f'buffer_store_dwordx4 v[20:23], v17, {WS_SRD}, {sT0} offen sc1')
    e.label('L_clr1')
    e(f's_mov_b64 exec, {sEX}')
    e(f's_cmp_lt_u32 {sJ}, 5')
    e('s_cbranch_scc0 L_clr2e')
    e(f's_mul_i32 {sT0}, {sH}, 10240')
    e(f's_lshl_b32 {sT1}, {sJ}, 9')
    e(f's_add_u32 {sT0}, {sT0}, {sT1}')
    e(f's_add_u32 {sT0}, {sT0}, {WS_S}')
    e('v_lshrrev_b32 v18, 5, v16')
    e('v_mul_u32_u24 v18, 2560, v18')
    e('v_and_b32 v19, 31, v16')
    e('v_lshlrev_b32 v19, 4, v19')
    e('v_add_u32 v18, v18, v19')
    e('v_cmp_gt_u32 vcc, 128, v16')
    e(f's_and_saveexec_b64 {sEX}, vcc')
    e('s_cbranch_execz L_clr2')
    e(f'buffer_store_dwordx4 v[20:23], v18, {WS_SRD}, {sT0} offen sc1')
    e.label('L_clr2')
    e(f's_mov_b64 exec, {sEX}')
    e.label('L_clr2e')
    def wo_dma():
        if cfg.NOWO: return
        e(f's_mov_b32 s20, s{pWO[0]}'); e(f's_mov_b32 s21, s{pWO[1]}'); e(f's_mov_b32 s22, {6144*1280}')
        e(f'v_lshrrev_b32 {t(0)}, 4, {vLANE}')
        e(f'v_mul_u32_u24 {t(0)}, 1280, {t(0)}')
        e(f'v_and_b32 {t(1)}, 15, {vLANE}')
        e(f'v_lshlrev_b32 {t(1)}, 4, {t(1)}')
        e(f'v_add_u32 {t(0)}, {t(0)}, {t(1)}')
        e(f's_sub_u32 {sT0}, {sWAVE}, 4')
        e(f's_mul_i32 {sT0}, {sT0}, 48')
        e(f's_mul_i32 {sT1}, {sH}, 192')
        e(f's_add_u32 {sT1}, {sT1}, {sT0}')
        e(f's_mul_i32 {sT1}, {sT1}, 1280')
        e(f's_lshl_b32 {sT2}, {sJ}, 8')
        e(f's_add_u32 {sT1}, {sT1}, {sT2}')
        e(f's_lshl_b32 {sT0}, {sT0}, 8')
        e(f's_add_u32 {sT0}, {sT0}, {L_WO}')
        for i in range(12):
            e(f's_mov_b32 m0, {sT0}')
            e(f'buffer_load_dwordx4 {t(0)}, {W_SRD}, {sT1} offen {WPOL} lds')
            if i < 11:
                e(f's_add_u32 {sT0}, {sT0}, 1024')
                e(f's_add_u32 {sT1}, {sT1}, {4*1280}')
    e(f's_cmp_lt_u32 {sJ}, 5')
    e('s_cbranch_scc0 L_hi_nowo')
    e(f's_cmp_eq_u32 {sROLE}, 1')
    e('s_cbranch_scc0 L_hi_r0')
    wo_dma()
    e('s_barrier')
    kv_prefetch()
    e(f's_waitcnt vmcnt({NPRE+12})')
    e('s_branch L_pre_b3')
    e.label('L_hi_r0')
    kv_prefetch()
    wo_dma()
    e(f's_waitcnt vmcnt({NPRE+12})')
    e('s_branch L_pre_b3')
    e.label('L_hi_nowo')
    kv_prefetch()
    e(f's_waitcnt vmcnt({NPRE})')
    e.label('L_pre_b3')
    e('s_barrier')
    e.label('L_post_b3')
    stamp(5)
    e(f's_cmp_eq_u32 {sWAVE}, 4')
    e('s_cbranch_scc0 L_noclr')
    e(f'v_mov_b32 {t(8)}, {4*D_CLR}')
    e('s_mov_b64 exec, 1')
    e(f'global_atomic_add {t(8)}, {vONE}, {pDBG}')
    e('s_mov_b64 exec, -1')
    e.label('L_noclr')
    if cfg.NOPRO: e('s_branch L_noffn2')
    e(f's_cmp_eq_u32 {sROLE}, 2')
    e('s_cbranch_scc0 L_noffn2')
    e(f's_cmp_eq_u32 {sWAVE}, 1')
    e('s_cbranch_scc0 L_noffn2')
    e('s_waitcnt vmcnt(0) lgkmcnt(0)')
    make_tags()
    e(f'v_lshlrev_b32 v16, 4, {vLANE}')
    e(f's_lshl_b32 {sT0}, {sKR}, 13')
    e(f's_add_u32 {sT0}, {sT0}, {WS_F1}')
    e(f's_mov_b32 {sSPIN}, 0')
    G0 = RING; U0_ = RING + 32
    if cfg.LIGHT:
        e(f'v_and_b32 v17, 7, {vLANE}')
        e('v_lshlrev_b32 v17, 10, v17')
        e(f'v_lshrrev_b32 v18, 3, {vLANE}')
        e(f'v_mul_u32_u24 v18, {24*1024}, v18')
        e('v_add_u32 v17, v17, v18')
        e('v_add_u32 v17, 1008, v17')
        e.label('L_f1light')
        e('s_mov_b64 exec, 0xffff')
        e(f'buffer_load_dwordx2 v[32:33], v17, {WS_SRD}, {sT0} offen offset:8 sc1')
        e('s_waitcnt vmcnt(0)')
        e(f'v_xor_b32 v32, {sTAG0}, v32')
        e(f'v_xor_b32 v33, {sTAG1}, v33')
        e('v_or_b32 v32, v32, v33')
        e('v_cmp_ne_u32 vcc, 0, v32')
        e('s_mov_b64 exec, -1')
        e('s_cbranch_vccz L_f1poll')
        e(f's_add_u32 {sSPIN}, {sSPIN}, 1')
        e(f's_cmp_lt_u32 {sSPIN}, {cfg.SPIN}')
        e('s_cbranch_scc0 L_f1poll')
        e(f's_sleep {4*cfg.SLP}')
        e('s_branch L_f1light')
    e.label('L_f1poll')
    e(f's_mov_b32 {sT1}, {sT0}')
    for i in range(8):
        e(f'buffer_load_dwordx4 v[{G0+4*i}:{G0+4*i+3}], v16, {WS_SRD}, {sT1} offen sc1')
        e(f's_add_u32 {sT2}, {sT1}, {24*1024}')
        e(f'buffer_load_dwordx4 v[{U0_+4*i}:{U0_+4*i+3}], v16, {WS_SRD}, {sT2} offen sc1')
        if i < 7: e(f's_add_u32 {sT1}, {sT1}, 1024')
    e('s_waitcnt vmcnt(0)')
    e('v_mov_b32 v32, 0')
    for i in range(16):
        r = G0 + 4*i
        e(f'v_xor_b32 v33, {sTAG0}, v{r+2}')
        e('v_or_b32 v32, v32, v33')
        e(f'v_xor_b32 v33, {sTAG1}, v{r+3}')
        e('v_or_b32 v32, v32, v33')
    e('v_cmp_ne_u32 vcc, 0, v32')
    e('s_cbranch_vccz L_f1poll_ok')
    e(f's_add_u32 {sSPIN}, {sSPIN}, 1')
    e(f's_cmp_lt_u32 {sSPIN}, {cfg.SPIN}')
    e('s_cbranch_scc0 L_f1poll_ok')
    e('s_sleep 2')
    e('s_branch L_f1poll')
    e.label('L_f1poll_ok')
    KB_ = 0.7978845608028654; KK = 0.044715
    e(f's_mov_b32 {sT3}, {H(KK)}')
    e(f's_mov_b32 {sT4}, {H(-2.0*KB_*LOG2E)}')
    e(f'v_lshlrev_b32 v17, 1, {vLANE}')
    e(f'v_add_u32 v17, {L_XN}, v17')
    for i in range(8):
        for b in range(4):
            gs = f'v{G0+4*i+(b>>1)}'; us = f'v{U0_+4*i+(b>>1)}'
            if b & 1:
                e(f'v_and_b32 v20, 0xffff0000, {gs}'); e(f'v_and_b32 v21, 0xffff0000, {us}')
            else:
                e(f'v_lshlrev_b32 v20, 16, {gs}'); e(f'v_lshlrev_b32 v21, 16, {us}')
            g = 'v20'; u = 'v21'
            e(f'v_mul_f32 v36, {g}, {g}')
            e(f'v_mul_f32 v36, v36, {g}')
            e(f'v_fma_f32 v36, v36, {sT3}, {g}')
            e(f'v_mul_f32 v36, {sT4}, v36')
            e(f'v_exp_f32 v36, v36')
            e(f'v_add_f32 v36, 1.0, v36')
            e(f'v_rcp_f32 v37, v36')
            e(f'v_mul_f32 v40, {g}, v37')
            e(f'v_fma_f32 v39, -v40, v36, {g}')
            e(f'v_fma_f32 v38, v39, v37, v40')
            e(f'v_cmp_o_f32 vcc, v38, v38')
            e(f'v_cndmask_b32 v38, v40, v38, vcc')
            rne('v38', 'v38')
            e(f'v_mul_f32 v38, v38, {u}')
            e(f'v_cvt_pk_bf16_f32 v38, v38, v38')
            e(f'ds_write_b16 v17, v38 offset:{b*HS + i*128}')
    e('s_waitcnt lgkmcnt(0)')
    frag_addr(L_W2, L_XN, HS)
    for tl in range(4): frag_tile(f'v{40+tl}', tl)
    for half in range(2):
        for k in range(8):
            tt = half*8+k
            e(f'ds_read_b128 v[{RING+4*tt}:{RING+4*tt+3}], {vA} offset:{tt*64}')
        e('s_waitcnt lgkmcnt(0)')
    for i in range(16): e(f'v_mov_b32 v{20+i}, 0')
    BR = RING + 64
    for tile in range(4):
        for grp in range(4):
            for k in range(4):
                tt = grp*4+k
                r = BR + k*4
                e(f'ds_read_b64_tr_b16 v[{r}:{r+1}], v{40+tile} offset:{tt*4096}')
                e(f'ds_read_b64_tr_b16 v[{r+2}:{r+3}], v{40+tile} offset:{tt*4096 + 512}')
            for k in range(4):
                tt = grp*4+k
                r = BR + k*4
                e(f's_waitcnt lgkmcnt({2*(3-k)})')
                e(f'v_mfma_f32_16x16x32_bf16 v[{20+4*tile}:{23+4*tile}], v[{RING+4*tt}:{RING+4*tt+3}], v[{r}:{r+3}], v[{20+4*tile}:{23+4*tile}]')
    e(f'v_lshlrev_b32 v16, 2, {vLANE}')
    e('s_mov_b64 exec, 0xffff')
    for b in range(4):
        e(f's_mul_i32 {sT0}, {sBSTR}, {b}')
        e(f's_add_u32 {sT0}, {sT0}, {sOUT}')
        for tile in range(4):
            e(f'buffer_store_dword v{20+4*tile+b}, v16, {WS_SRD}, {sT0} offen offset:{tile*64} sc1')
    e('s_mov_b64 exec, -1')
    kv_prefetch()
    e.label('L_noffn2')

    e(f's_mul_i32 {sT0}, {sWAVE}, {4*SLOT}')
    e(f's_add_u32 {sT0}, {sT0}, {L_W}')
    e(f'v_lshlrev_b32 {t(0)}, 4, {vLANE}')
    e(f'v_add_u32 {t(0)}, {sT0}, {t(0)}')
    for i in range(4): e(f'v_mov_b32 {t(4+i)}, 0')
    pair = f'v[{T0+4}:{T0+7}]'
    for i in range(3): e(f'ds_write_b128 {t(0)}, {pair} offset:{i*1024}')
    e('s_mov_b64 exec, 0xf')
    e(f'ds_write_b128 {t(0)}, {pair} offset:3072')
    e(f'v_mul_u32_u24 {t(1)}, {SLOT}, {vLANE}')
    e(f'v_add_u32 {t(1)}, {sT0}, {t(1)}')
    e(f'v_mov_b32 {t(2)}, {H(NEG)}')
    e(f'ds_write_b32 {t(1)}, {t(2)} offset:768')
    e('s_mov_b64 exec, -1')
    def load_q():
        e(f's_mul_i32 {sT0}, {sCURB}, 384')
        e(f'v_add_u32 {t(0)}, {sT0}, {vQA}')
        for i in range(3):
            e(f'ds_read_b128 v[{Q0+4*i}:{Q0+4*i+3}], {t(0)} offset:{i*128}')
    def reset_state():
        for i in range(24): e(f'v_mov_b32 v{ACC+i}, 0')
        e(f'v_mov_b32 {vM}, {H(NEG)}')
        e(f'v_mov_b32 {vL}, 0')
    e(f's_mov_b32 {sCURB}, 0')
    if cfg.TS:
        e(f's_mov_b32 {sNST}, 0')
        e('s_mov_b32 s76, 0'); e('s_mov_b32 s77, 0'); e('s_mov_b32 s78, 0')
        e('s_memtime s[98:99]')
        e('s_waitcnt lgkmcnt(0)')
        e('s_mov_b32 s79, s98')
    load_q()
    reset_state()
    e(f's_mov_b32 {sT3}, {H(SCALE)}')
    e(f's_mov_b32 {sT4}, {H(LOG2E)}')
    e('s_waitcnt lgkmcnt(0)')

    def flush():
        M = t(0); tmp = t(1); sc = t(2); Ls = t(3)
        e(f'v_mov_b32 {M}, {vM}')
        e(f'v_max_f32_dpp {M}, {M}, {M} row_ror:8 row_mask:0xf bank_mask:0xf')
        e(f'v_mov_b32 {tmp}, {M}')
        e(f'v_permlane16_swap_b32 {M}, {tmp}')
        e(f'v_max_f32 {M}, {M}, {tmp}')
        e(f'v_mov_b32 {tmp}, {M}')
        e(f'v_permlane32_swap_b32 {M}, {tmp}')
        e(f'v_max_f32 {M}, {M}, {tmp}')
        e(f'v_sub_f32 {sc}, {vM}, {M}')
        e(f'v_mul_f32 {sc}, {sT4}, {sc}')
        e(f'v_exp_f32 {sc}, {sc}')
        e(f'v_mul_f32 {Ls}, {vL}, {sc}')
        for i in range(24): e(f'v_mul_f32 v{ACC+i}, v{ACC+i}, {sc}')
        e(f'v_add_f32_dpp {Ls}, {Ls}, {Ls} row_ror:8 row_mask:0xf bank_mask:0xf')
        e(f'v_mov_b32 {tmp}, {Ls}')
        e(f'v_permlane16_swap_b32 {Ls}, {tmp}')
        e(f'v_add_f32 {Ls}, {Ls}, {tmp}')
        e(f'v_mov_b32 {tmp}, {Ls}')
        e(f'v_permlane32_swap_b32 {Ls}, {tmp}')
        e(f'v_add_f32 {Ls}, {Ls}, {tmp}')
        A = lambda i, x: f'v{ACC+i*8+x}'
        for i in range(3):
            for x in range(4): e(f'v_permlane32_swap_b32 {A(i,x)}, {A(i,x+4)}')
        for i in range(3):
            for x in range(4): e(f'v_add_f32 {A(i,x)}, {A(i,x)}, {A(i,x+4)}')
        for i in range(3):
            for x in range(2): e(f'v_permlane16_swap_b32 {A(i,x)}, {A(i,x+2)}')
        for i in range(3):
            for x in range(2): e(f'v_add_f32 {A(i,x)}, {A(i,x)}, {A(i,x+2)}')
        for i in range(3):
            e(f'v_add_f32_dpp {A(i,0)}, {A(i,0)}, {A(i,0)} row_ror:8 row_mask:0xf bank_mask:0x3')
        for i in range(3):
            e(f'v_add_f32_dpp {A(i,0)}, {A(i,1)}, {A(i,1)} row_ror:8 row_mask:0xf bank_mask:0xc')
        e(f's_lshl_b32 {sT0}, {sWAVE}, 2')
        e(f's_add_u32 {sT0}, {sT0}, {sCURB}')
        e(f's_mul_i32 {sT0}, {sT0}, {SLOT}')
        e(f's_add_u32 {sT0}, {sT0}, {L_W}')
        e(f'v_add_u32 {tmp}, {sT0}, {vFL}')
        for i in range(3): e(f'ds_write_b32 {tmp}, {A(i,0)} offset:{i*256}')
        e(f'v_mov_b32 {tmp}, {sT0}')
        e(f'v_mov_b32 {t(1+3)}, {M}')
        e(f'v_mov_b32 {t(5)}, {Ls}')
        e('s_mov_b64 exec, 1')
        e(f'ds_write_b64 {tmp}, v[{T0+4}:{T0+5}] offset:768')
        e('s_mov_b64 exec, -1')

    outofline = []
    if cfg.TS == 2:
        e(f's_lshl_b32 {sT0}, {sWAVE}, 8')
        e(f's_add_u32 s75, {sT0}, {L_END}')
        e(f'v_lshlrev_b32 {t(0)}, 2, {vLANE}')
        e(f'v_add_u32 {t(0)}, s75, {t(0)}')
        e(f'v_mov_b32 {t(1)}, 0')
        e(f'ds_write_b32 {t(0)}, {t(1)}')
        e('s_mov_b32 s74, 0')
    def tile(s, st, NK, NVw, refill, tag):
        e(f's_waitcnt vmcnt({NK})')
        k = lambda i: f'v{kreg(s,0,st)+i}'
        ptref = cfg.PT and refill
        q = lambda i: f'v{Q0+i}'
        d0, d1, d2 = t(0), t(1), t(2)
        e(f'v_dot2_f32_bf16 {d0}, {k(0)}, {q(0)}, 0')
        e(f'v_dot2_f32_bf16 {d1}, {k(4)}, {q(4)}, 0')
        e(f'v_dot2_f32_bf16 {d2}, {k(8)}, {q(8)}, 0')
        if ptref: e(f'v_readfirstlane_b32 {sTP(s)}, {vTKP(s)}')
        elif cfg.PT: e('s_nop 0')
        elif s == 0 and refill: e(f'v_readfirstlane_b32 {sNXT}, {vTK}')
        else: e('s_nop 0')
        for w in range(1,4):
            e(f'v_dot2c_f32_bf16 {d0}, {k(w)}, {q(w)}')
            e(f'v_dot2c_f32_bf16 {d1}, {k(4+w)}, {q(4+w)}')
            e(f'v_dot2c_f32_bf16 {d2}, {k(8+w)}, {q(8+w)}')
        if ptref:
            e(f's_add_u32 {sTP(s)}, {sTP(s)}, {PTOFF}')
            tile_to_off(sTP(s))
            issueKp(s)
            e('s_mov_b64 exec, 1')
            e(f'global_atomic_add {vTKP(s)}, {vCNT}, {vONE}, {pWS} sc0')
            e('s_mov_b64 exec, -1')
        elif refill and not cfg.PT:
            if s == 0:
                e(f's_add_u32 {sNXT}, {sNXT}, {64*NSTAT}')
                chunk_to_off(sNXT)
                e('s_mov_b64 exec, 1')
                e(f'global_atomic_add {vTK}, {vCNT}, {vONE}, {pWS} sc0')
                e('s_mov_b64 exec, -1')
            issueK(s)
        e(f'v_add_f32 {d0}, {d0}, {d1}')
        e(f'v_add_f32 {d0}, {d0}, {d2}')
        for d in ('quad_perm:[1,0,3,2]','quad_perm:[2,3,0,1]','row_half_mirror'):
            if not (cfg.STRIP & 4): e(f'v_add_f32_dpp {d0}, {d0}, {d0} {d} row_mask:0xf bank_mask:0xf')
        if not (cfg.STRIP & 2):
            rne(d0, d0)
            e(f'v_mul_f32 {d0}, {sT3}, {d0}')
            rne(d0, d0)
            e(f'v_cmp_gt_f32 vcc, {d0}, {vM}')
            e(f's_cbranch_vccnz L_rs{tag}')
        e.label(f'L_rsret{tag}')
        if not (cfg.STRIP & 2):
            e(f'v_sub_f32 {d1}, {d0}, {vM}')
            e(f'v_mul_f32 {d1}, {sT4}, {d1}')
            e(f'v_exp_f32 {d1}, {d1}')
            e(f'v_add_f32 {vL}, {vL}, {d1}')
        e(f'v_cvt_pk_bf16_f32 {t(3)}, {d1}, 0')
        e(f'v_cvt_pk_bf16_f32 {t(4)}, 0, {d1}')
        e(f's_waitcnt vmcnt({NVw})')
        for i in range(3):
            for w in range(4):
                vv = f'v{vreg(s,i,st)+w}'
                e(f'v_dot2c_f32_bf16 v{ACC+i*8+2*w}, {vv}, {t(3)}')
                if not (cfg.STRIP & 1): e(f'v_dot2c_f32_bf16 v{ACC+i*8+2*w+1}, {vv}, {t(4)}')
        if ptref: issueVp(s)
        elif refill and not cfg.PT: issueV(s)
        def f():
            e.label(f'L_rs{tag}')
            e(f'v_max_f32 {t(1)}, {vM}, {t(0)}')
            e(f'v_sub_f32 {t(2)}, {vM}, {t(1)}')
            e(f'v_mul_f32 {t(2)}, {sT4}, {t(2)}')
            e(f'v_exp_f32 {t(2)}, {t(2)}')
            e(f'v_mov_b32 {vM}, {t(1)}')
            e(f'v_mul_f32 {vL}, {vL}, {t(2)}')
            for i in range(24): e(f'v_mul_f32 v{ACC+i}, v{ACC+i}, {t(2)}')
            e(f's_branch L_rsret{tag}')
        outofline.append(f)
    def ts_log():
        if cfg.TS == 2:
            e('s_memrealtime s[96:97]')
            e('s_waitcnt lgkmcnt(0)')
            e(f's_add_u32 {sT0}, s75, s74')
            e(f'v_mov_b32 {t(0)}, {sT0}')
            e(f'v_mov_b32 {t(1)}, s96')
            e(f'ds_write_b32 {t(0)}, {t(1)}')
            e('s_add_u32 s74, s74, 4')
            e('s_min_u32 s74, s74, 252')
            e(f's_add_u32 {sNST}, {sNST}, {NS}')
    if NB > 0:
        ops = []
        for st in range(NB+1):
            for s_ in range(NS):
                ops += [('K',st,s_)]*3 + [('V',st,s_)]*3
        def after(key):
            last = max(i for i,o in enumerate(ops) if o == key)
            return len(ops) - 1 - last
        for s_ in range(NS):
            nk = after(('K',0,s_))
            extra = ([('A',)] if s_ == 0 else []) + [('K','n',s_)]*3
            ops_tmp = ops + extra
            last = max(i for i,o in enumerate(ops_tmp) if o == ('V',0,s_))
            nv = len(ops_tmp) - 1 - last
            tile(s_, 0, nk, nv, True, f'i0_{s_}')
            ops = ops_tmp + [('V','n',s_)]*3
        ts_log()
        for st in range(1, NB+1):
            for s_ in range(NS):
                tile(s_, st, after(('K',st,s_)), after(('V',st,s_)), False, f'b{st}_{s_}')
            ts_log()
        e(f's_mov_b32 {sCUR}, {sNXT}')
    if cfg.PT:
        ops = []
        for s_ in range(NS): ops += [('K',s_)]*3 + [('V',s_)]*3
        for u in range(NBT): ops += [('SK',u)]*3 + [('SV',u)]*3
        def after_(lst, key):
            last = max(i for i,o in enumerate(lst) if o == key)
            return len(lst) - 1 - last
        for s_ in range(NS):
            nk = after_(ops, ('K',s_))
            ops2 = ops + [('Kn',s_)]*3 + [('A',s_)]
            nv = after_(ops2, ('V',s_))
            tile(s_, 0, nk, nv, True, f'pi{s_}')
            ops = ops2 + [('Vn',s_)]*3
        for u in range(NBT):
            tile(NS+u, 0, after_(ops, ('SK',u)), after_(ops, ('SV',u)), False, f'ps{u}')
        e.label('L_loop')
        N1 = 3 + 7*(NS-1); N2 = 7*(NS-1) + 4
        for s_ in range(NS):
            e(f's_cmp_ge_u32 {sTP(s_)}, 4096')
            e('s_cbranch_scc1 L_exit')
            e(f's_lshr_b32 {sT0}, {sTP(s_)}, 10')
            e(f's_cmp_lg_u32 {sT0}, {sCURB}')
            e(f's_cbranch_scc1 L_swp{s_}')
            e.label(f'L_swpret{s_}')
            tile(s_, 0, N1, N2, True, f'p{s_}')
            def mkp(s_):
                def f():
                    e.label(f'L_swp{s_}')
                    flush()
                    e(f's_lshr_b32 {sCURB}, {sTP(s_)}, 10')
                    if cfg.TS == 2:
                        e('s_memrealtime s[96:97]')
                        e('s_waitcnt lgkmcnt(0)')
                        e(f's_cmp_eq_u32 {sCURB}, 1'); e('s_cselect_b32 s76, s96, s76')
                        e(f's_cmp_eq_u32 {sCURB}, 2'); e('s_cselect_b32 s77, s96, s77')
                        e(f's_cmp_eq_u32 {sCURB}, 3'); e('s_cselect_b32 s78, s96, s78')
                    load_q()
                    reset_state()
                    e('s_waitcnt lgkmcnt(0)')
                    e(f's_branch L_swpret{s_}')
                return f
            outofline.append(mkp(s_))
        ts_log()
        e('s_branch L_loop')
    e.label('L_loop' if not cfg.PT else 'L_loop_unused')
    e(f's_cmp_ge_u32 {sCUR}, {TOTC}')
    e('s_cbranch_scc1 L_exit')
    e(f's_lshr_b32 {sT0}, {sCUR}, {LCPB}')
    e(f's_cmp_lg_u32 {sT0}, {sCURB}')
    e('s_cbranch_scc1 L_sw')
    e.label('L_swret')
    for s_ in range(NS):
        NK = 3 + 6*(NS-1) if s_ == 0 else 6*NS - 2
        tile(s_, 0, NK, 6*NS - 2, True, f'm{s_}')
    ts_log()
    e(f's_mov_b32 {sCUR}, {sNXT}')
    e('s_branch L_loop')
    e.label('L_sw')
    flush()
    e(f's_lshr_b32 {sCURB}, {sCUR}, {LCPB}')
    if cfg.TS == 2:
        e('s_memrealtime s[96:97]')
        e('s_waitcnt lgkmcnt(0)')
        e(f's_cmp_eq_u32 {sCURB}, 1'); e('s_cselect_b32 s76, s96, s76')
        e(f's_cmp_eq_u32 {sCURB}, 2'); e('s_cselect_b32 s77, s96, s77')
        e(f's_cmp_eq_u32 {sCURB}, 3'); e('s_cselect_b32 s78, s96, s78')
    load_q()
    reset_state()
    e('s_waitcnt lgkmcnt(0)')
    e('s_branch L_swret')
    for f in outofline: f()

    e.label('L_exit')
    stamp(6)
    if cfg.TS:
        e('s_memtime s[98:99]')
        e('s_waitcnt lgkmcnt(0)')
        e('s_sub_u32 s79, s98, s79')
    e(f'v_mov_b32 {t(8)}, {4*D_CLR}')
    if not cfg.LATEWAIT: e('s_waitcnt vmcnt(0)')
    e(f'global_load_dword {t(9)}, {t(8)}, {pDBG} sc1')
    flush()
    e('s_waitcnt lgkmcnt(0)')
    e('s_barrier')
    e('s_waitcnt vmcnt(0)')
    stamp(7)
    if cfg.NOTAIL: e('s_branch L_END2')
    e(f's_cmp_lt_u32 {sJ}, 5')
    e('s_cbranch_scc0 L_nopre')
    e(f'v_lshrrev_b32 v24, 4, {vLANE}')
    e(f'v_and_b32 v25, 15, {vLANE}')
    e(f'v_lshrrev_b32 v26, 2, v25')
    e(f'v_and_b32 v27, 3, v25')
    e(f'v_lshlrev_b32 v16, 3, v24')
    e(f'v_add_u32 v16, v16, v26')
    e(f'v_lshlrev_b32 v16, 8, v16')
    e(f'v_lshlrev_b32 v27, 3, v27')
    e(f'v_add_u32 v16, v16, v27')
    e(f's_lshl_b32 {sT0}, {sWAVE}, 5')
    e(f's_add_u32 {sT0}, {sT0}, {L_WO}')
    e(f'v_add_u32 v16, {sT0}, v16')
    for k in range(6):
        e(f'ds_read_b64_tr_b16 v[{64+4*k}:{65+4*k}], v16 offset:{k*8192}')
        e(f'ds_read_b64_tr_b16 v[{66+4*k}:{67+4*k}], v16 offset:{k*8192+1024}')
    e.label('L_nopre')
    e(f's_cmp_ge_u32 {sWAVE}, 3')
    e('s_cbranch_scc1 L_tail_hi')
    e(f'v_mul_u32_u24 v16, 1366, v0')
    e(f'v_lshrrev_b32 v16, 16, v16')
    e(f'v_mul_u32_u24 v17, 48, v16')
    e(f'v_sub_u32 v17, v0, v17')
    e(f'v_mul_u32_u24 v18, {SLOT}, v16')
    e(f'v_add_u32 v18, {L_W}, v18')
    e(f'v_lshlrev_b32 v19, 4, v17')
    e(f'v_add_u32 v19, v18, v19')
    for w in range(8):
        e(f'ds_read_b64 v[{20+2*w}:{21+2*w}], v18 offset:{w*4*SLOT+768}')
    e('s_waitcnt lgkmcnt(0)')
    for w in range(8):
        e(f'ds_read_b128 v[{96+4*w}:{99+4*w}], v19 offset:{w*4*SLOT}')
    e('v_max_f32 v36, v20, v22')
    for w in range(2,8): e(f'v_max_f32 v36, v36, v{20+2*w}')
    for w in range(8):
        e(f'v_sub_f32 v{20+2*w}, v{20+2*w}, v36')
        e(f'v_mul_f32 v{20+2*w}, {sT4}, v{20+2*w}')
        e(f'v_exp_f32 v{20+2*w}, v{20+2*w}')
    e('v_mul_f32 v37, v20, v21')
    for w in range(1,8): e(f'v_fmac_f32 v37, v{20+2*w}, v{21+2*w}')
    e('s_waitcnt lgkmcnt(0)')
    for x in range(4): e(f'v_mul_f32 v{40+x}, v20, v{96+x}')
    for w in range(1,8):
        for x in range(4): e(f'v_fmac_f32 v{40+x}, v{20+2*w}, v{96+4*w+x}')
    e(f's_lshl_b32 {sT0}, {sH}, 3')
    e(f's_add_u32 {sT0}, {sT0}, {sJ}')
    e(f's_mul_i32 {sT0}, {sT0}, {OSLOT}')
    e(f's_add_u32 {sT0}, {sT0}, {WS_O}')
    e(f'v_mul_u32_u24 v18, {OB}, v16')
    e(f'v_lshlrev_b32 v19, 4, v17')
    e(f'v_add_u32 v19, v18, v19')
    e(f'buffer_store_dwordx4 v[40:43], v19, {WS_SRD}, {sT0} offen sc1')
    e('v_mov_b32 v38, 0'); e('v_mov_b32 v39, 0')
    e('v_cmp_eq_u32 vcc, 0, v17')
    e(f's_and_saveexec_b64 {sEX}, vcc')
    e('s_cbranch_execz L_noml')
    e(f'buffer_store_dwordx4 v[36:39], v18, {WS_SRD}, {sT0} offen offset:768 sc1')
    e.label('L_noml')
    e(f's_mov_b64 exec, {sEX}')
    stamp(8)
    e(f's_cmp_lt_u32 {sJ}, 5')
    e('s_cbranch_scc0 L_END2')
    def cleared_check(lbl):
        e('s_waitcnt vmcnt(0)')
        e(f'v_readfirstlane_b32 {sT0}, {t(9)}')
        e(f's_cmp_eq_u32 {sT0}, 256')
        e(f's_cbranch_scc1 {lbl}_done')
        e(f'v_mov_b32 {t(8)}, {4*D_CLR}')
        spin_poll(lbl, None, 256)
        e.label(f'{lbl}_done')
    cleared_check('L_clrA')
    e(f's_mul_i32 {sT0}, {sH}, {8*OSLOT}')
    e(f's_add_u32 {sT0}, {sT0}, {WS_O}')
    e(f's_mov_b32 {sSPIN}, 0')
    if cfg.TLIGHT:
        e(f'v_mul_u32_u24 v46, {OSLOT}, {vLANE}')
        e.label('L_g1light')
        e('s_mov_b64 exec, 0xff')
        e(f'buffer_load_dword v47, v46, {WS_SRD}, {sT0} offen offset:{3*OB+768} sc1')
        e('s_waitcnt vmcnt(0)')
        e('v_cmp_eq_u32 vcc, -1, v47')
        e('s_mov_b64 exec, -1')
        e('s_cbranch_vccz L_g1')
        e(f's_add_u32 {sSPIN}, {sSPIN}, 1')
        e(f's_cmp_lt_u32 {sSPIN}, {cfg.SPIN}')
        e('s_cbranch_scc0 L_g1')
        e(f's_sleep {cfg.SLP}')
        e('s_branch L_g1light')
    e.label('L_g1')
    e(f's_mov_b32 {sT1}, {sT0}')
    for w in range(8):
        e(f'buffer_load_dwordx4 v[{96+4*w}:{99+4*w}], v19, {WS_SRD}, {sT1} offen sc1')
        e(f'buffer_load_dwordx2 v[{20+2*w}:{21+2*w}], v18, {WS_SRD}, {sT1} offen offset:768 sc1')
        if w < 7: e(f's_add_u32 {sT1}, {sT1}, {OSLOT}')
    e('s_waitcnt vmcnt(0)')
    e('v_max3_u32 v36, v96, v97, v98')
    for r in range(99,127,2): e(f'v_max3_u32 v36, v36, v{r}, v{r+1}')
    e('v_max_u32 v36, v36, v127')
    for r in range(20,36,2): e(f'v_max3_u32 v36, v36, v{r}, v{r+1}')
    e('v_cmp_eq_u32 vcc, -1, v36')
    e('s_cbranch_vccz L_g1_ok')
    e(f's_add_u32 {sSPIN}, {sSPIN}, 1')
    e(f's_cmp_lt_u32 {sSPIN}, {cfg.SPIN}')
    e('s_cbranch_scc0 L_g1_ok')
    e('s_sleep 1')
    e('s_branch L_g1')
    e.label('L_g1_ok')
    stamp(9)
    e('v_max_f32 v36, v20, v22')
    for w in range(2,8): e(f'v_max_f32 v36, v36, v{20+2*w}')
    for w in range(8):
        e(f'v_sub_f32 v{20+2*w}, v{20+2*w}, v36')
        e(f'v_mul_f32 v{20+2*w}, {sT4}, v{20+2*w}')
        e(f'v_exp_f32 v{20+2*w}, v{20+2*w}')
    e('v_mul_f32 v37, v20, v21')
    for w in range(1,8): e(f'v_fmac_f32 v37, v{20+2*w}, v{21+2*w}')
    for x in range(4): e(f'v_mul_f32 v{40+x}, v20, v{96+x}')
    for w in range(1,8):
        for x in range(4): e(f'v_fmac_f32 v{40+x}, v{20+2*w}, v{96+4*w+x}')
    e('v_rcp_f32 v38, v37')
    for x in range(4):
        e(f'v_mul_f32 v44, v{40+x}, v38')
        e(f'v_fma_f32 v45, -v44, v37, v{40+x}')
        e(f'v_fma_f32 v{40+x}, v45, v38, v44')
    e('v_cvt_pk_bf16_f32 v44, v40, v41')
    e('v_cvt_pk_bf16_f32 v45, v42, v43')
    e(f'v_mul_u32_u24 v18, {OS}, v16')
    e('v_lshlrev_b32 v19, 3, v17')
    e('v_add_u32 v18, v18, v19')
    e(f'v_add_u32 v18, {L_O}, v18')
    e('ds_write_b64 v18, v[44:45]')
    e('s_waitcnt lgkmcnt(0)')
    e('s_branch L_b5')
    e.label('L_tail_hi')
    e(f's_cmp_lt_u32 {sJ}, 5')
    e('s_cbranch_scc1 L_b5w')
    e(f's_cmp_eq_u32 {sWAVE}, 3')
    e('s_cbranch_scc0 L_END2')
    e(f's_cmp_eq_u32 {sJ}, 7')
    e('s_cbranch_scc1 L_END2')
    e(f's_sub_u32 {sT0}, {sJ}, 5')
    e(f's_lshl_b32 {sT0}, {sT0}, 5')
    e(f's_add_u32 {sT0}, {sT0}, {sH}')
    e(f's_cmp_ge_u32 {sT0}, 40')
    e('s_cbranch_scc1 L_END2')
    e(f's_mul_i32 {sT1}, {sT0}, 205')
    e(f's_lshr_b32 {sT1}, {sT1}, 11')
    e(f's_mul_i32 {sT2}, {sT1}, 10')
    e(f's_sub_u32 {sT2}, {sT0}, {sT2}')
    e(f's_mov_b32 {sKR}, {sT1}')
    e(f's_mov_b32 {sFLAG}, {sT2}')
    cleared_check('L_clrB')
    e('s_mov_b32 s92, s44'); e('s_mov_b32 s93, s45'); e('s_mov_b32 s94, 5120'); e('s_mov_b32 s95, 0x20000')
    e(f's_mul_i32 {sT0}, {sKR}, 1280')
    e(f's_lshl_b32 {sT1}, {sFLAG}, 7')
    e(f's_add_u32 {sT0}, {sT0}, {sT1}')
    e(f's_mov_b32 {sOUT}, {sT0}')
    e(f'v_lshlrev_b32 v16, 1, {vLANE}')
    e(f'buffer_load_ushort v17, v16, s[92:95], {sOUT} offen')
    e(f'v_lshlrev_b32 v18, 2, {vLANE}')
    e(f's_mul_i32 {sT0}, {sKR}, 2560')
    e(f's_lshl_b32 {sT1}, {sFLAG}, 8')
    e(f's_add_u32 {sBSTR}, {sT0}, {sT1}')
    e(f's_mov_b32 {sSPIN}, 0')
    if cfg.TLIGHT:
        e(f'v_mul_u32_u24 v46, 10240, {vLANE}')
        e(f's_add_u32 {sT1}, {sBSTR}, {WS_S}')
        e.label('L_g2light')
        e('s_mov_b32 exec_lo, -1'); e('s_mov_b32 exec_hi, 0')
        e(f'buffer_load_dword v47, v46, {WS_SRD}, {sT1} offen offset:252 sc1')
        e('s_waitcnt vmcnt(0)')
        e('v_cmp_eq_u32 vcc, -1, v47')
        e('s_mov_b64 exec, -1')
        e('s_cbranch_vccz L_g2')
        e(f's_add_u32 {sSPIN}, {sSPIN}, 1')
        e(f's_cmp_lt_u32 {sSPIN}, {cfg.SPIN}')
        e('s_cbranch_scc0 L_g2')
        e(f's_sleep {cfg.SLP}')
        e('s_branch L_g2light')
    e.label('L_g2')
    e(f's_add_u32 {sT1}, {sBSTR}, {WS_S}')
    for hh in range(32):
        e(f'buffer_load_dword v{64+hh}, v18, {WS_SRD}, {sT1} offen sc1')
        if hh < 31: e(f's_add_u32 {sT1}, {sT1}, 10240')
    e(f's_add_u32 {sT1}, {sBSTR}, {WS_D}')
    for kr in range(3):
        e(f'buffer_load_dword v{96+kr}, v18, {WS_SRD}, {sT1} offen sc1')
        if kr < 2: e(f's_add_u32 {sT1}, {sT1}, 10240')
    e('s_waitcnt vmcnt(0)')
    e('v_max3_u32 v36, v64, v65, v66')
    for r in range(67,95,2): e(f'v_max3_u32 v36, v36, v{r}, v{r+1}')
    e('v_max3_u32 v36, v36, v95, v96')
    e('v_max3_u32 v36, v36, v97, v98')
    e('v_cmp_eq_u32 vcc, -1, v36')
    e('s_cbranch_vccz L_g2_ok')
    e(f's_add_u32 {sSPIN}, {sSPIN}, 1')
    e(f's_cmp_lt_u32 {sSPIN}, {cfg.SPIN}')
    e('s_cbranch_scc0 L_g2_ok')
    e('s_sleep 1')
    e('s_branch L_g2')
    e.label('L_g2_ok')
    stamp(9)
    for r in range(0,32,2): e(f'v_add_f32 v{64+r}, v{64+r}, v{65+r}')
    for r in range(0,32,4): e(f'v_add_f32 v{64+r}, v{64+r}, v{66+r}')
    for r in range(0,32,8): e(f'v_add_f32 v{64+r}, v{64+r}, v{68+r}')
    e('v_add_f32 v64, v64, v72'); e('v_add_f32 v80, v80, v88'); e('v_add_f32 v64, v64, v80')
    rne('v64','v64')
    e('v_add_f32 v96, v96, v97'); e('v_add_f32 v96, v96, v98')
    rne('v96','v96')
    e(f'v_mul_f32 v20, {H(-LOG2E)}, v96')
    e('v_exp_f32 v20, v20')
    e('v_add_f32 v20, 1.0, v20')
    e('v_rcp_f32 v21, v20')
    e('v_mul_f32 v22, v96, v21')
    e('v_fma_f32 v23, -v22, v20, v96')
    e('v_fma_f32 v23, v23, v21, v22')
    e('v_cmp_o_f32 vcc, v23, v23')
    e('v_cndmask_b32 v22, v22, v23, vcc')
    rne('v22','v22')
    e('v_mul_f32 v22, v64, v22')
    rne('v22','v22')
    e('v_lshlrev_b32 v17, 16, v17')
    e('v_add_f32 v22, v17, v22')
    e('v_cvt_pk_bf16_f32 v22, v22, v22')
    e(f's_mov_b32 s92, s{pOUT[0]}'); e(f's_mov_b32 s93, s{pOUT[1]}'); e('s_mov_b32 s94, 5120'); e('s_mov_b32 s95, 0x20000')
    e(f'buffer_store_short v22, v16, s[92:95], {sOUT} offen')
    e(f's_cmp_eq_u32 {sH}, 0')
    e('s_cbranch_scc0 L_END2')
    e(f's_cmp_eq_u32 {sJ}, 5')
    e('s_cbranch_scc0 L_END2')
    e(f's_add_u32 {sT0}, {sE0}, 1')
    e(f's_add_u32 {sT1}, {sE1}, 0x9e3779b9')
    e(f'v_mov_b32 v20, {sT0}')
    e(f'v_mov_b32 v21, {sT1}')
    e(f'v_mov_b32 v22, {WS_E}')
    e('s_mov_b64 exec, 1')
    e(f'global_store_dwordx2 v22, v[20:21], {pWS} sc1')
    e('s_mov_b64 exec, -1')
    e('s_branch L_END2')

    e.label('L_b5w')
    e('s_waitcnt lgkmcnt(0)')
    e.label('L_b5')
    e('s_barrier')
    e(f'v_and_b32 v16, 3, {vLANE}')
    e(f'v_mul_u32_u24 v16, {OS}, v16')
    e(f'v_lshrrev_b32 v17, 4, {vLANE}')
    e('v_lshlrev_b32 v17, 4, v17')
    e('v_add_u32 v16, v16, v17')
    e(f'v_add_u32 v16, {L_O}, v16')
    for k in range(6):
        e(f'ds_read_b128 v[{96+4*k}:{99+4*k}], v16 offset:{k*64}')
    for i in range(4): e(f'v_mov_b32 v{20+i}, 0')
    for k in range(6):
        e(f's_waitcnt lgkmcnt({5-k})')
        e(f'v_mfma_f32_16x16x32_bf16 v[20:23], v[{96+4*k}:{99+4*k}], v[{64+4*k}:{67+4*k}], v[20:23]')
    e(f's_mul_i32 {sT0}, {sH}, 10240')
    e(f's_lshl_b32 {sT1}, {sJ}, 9')
    e(f's_add_u32 {sT0}, {sT0}, {sT1}')
    e(f's_lshl_b32 {sT1}, {sWAVE}, 6')
    e(f's_add_u32 {sT0}, {sT0}, {sT1}')
    e(f's_add_u32 {sT0}, {sT0}, {WS_S}')
    e(f'v_lshlrev_b32 v24, 2, {vLANE}')
    e('s_mov_b64 exec, 0xffff')
    for i in range(4):
        e(f'buffer_store_dword v{20+i}, v24, {WS_SRD}, {sT0} offen sc1')
        if i < 3: e(f's_add_u32 {sT0}, {sT0}, 2560')
    e('s_mov_b64 exec, -1')
    e.label('L_END2')
    if cfg.TS:
        stamp(10)
        e(f's_lshl_b32 {sT0}, s2, 3')
        e(f's_add_u32 {sT0}, {sT0}, {sWAVE}')
        e(f's_lshl_b32 {sT0}, {sT0}, 7')
        e(f's_add_u32 {sT0}, {sT0}, {WS_TS}')
        if cfg.TS == 2:
            e(f'v_lshlrev_b32 v16, 2, {vLANE}')
            e(f'v_add_u32 v17, s75, v16')
            e('ds_read_b32 v18, v17')
            e(f's_lshl_b32 {sT1}, {sT0}, 1')
            e(f's_sub_u32 {sT1}, {sT1}, {WS_TS}')
            e(f's_sub_u32 {sT1}, {sT1}, {WS_TS}')
            e(f's_add_u32 {sT1}, {sT1}, {WS_TS2}')
            e('s_waitcnt lgkmcnt(0)')
            e(f'buffer_store_dword v18, v16, {WS_SRD}, {sT1} offen')
        e('s_mov_b64 exec, 1')
        e('v_mov_b32 v16, 0')
        e(f'v_mov_b32 v24, {sNST}')
        e('v_mov_b32 v25, s79')
        e(f'buffer_store_dwordx2 v[24:25], v16, {WS_SRD}, {sT0} offen offset:48')
        e('v_mov_b32 v28, s76'); e('v_mov_b32 v29, s77'); e('v_mov_b32 v30, s78'); e('v_mov_b32 v31, 0')
        e(f'buffer_store_dwordx4 v[28:31], v16, {WS_SRD}, {sT0} offen offset:64')
        for k in range(0,12,4):
            for x in range(4): e(f'v_mov_b32 v{20+x}, s{sTSB+k+x}')
            e(f'buffer_store_dwordx4 v[20:23], v16, {WS_SRD}, {sT0} offen offset:{k*4}')
            e('s_nop 2')
    e('s_waitcnt vmcnt(0)')
    e.label('L_END')
    e('s_endpgm')

    body = hazard_pass([l for l in e.lines if l])
    return body, NV

HEADER = open('recurrent_scan__mha_block_cached__geglu_ffn__decode.s.ref').read().split('; Override launch geometry')[0]

def build(cfg):
    body, NV = gen(cfg)
    NV = getattr(cfg,'NVF',0) or NV
    out = [HEADER.rstrip('\n')]
    out.append('; Override launch geometry by editing the next line (default: block=256,')
    out.append(f'; @launch grid=(256,1,1) block=(512,1,1) lds={getattr(cfg,"LDS",0) or (L_END + (2048 if cfg.TS else 0))}')
    out.append('.amdgcn_target "amdgcn-amd-amdhsa--gfx950"')
    out.append('.text')
    out.append(f'.globl {KNAME}')
    out.append('.p2align 8')
    out.append(f'.type {KNAME},@function')
    for l in body:
        out.append(l if l.endswith(':') else '    ' + l)
    out.append('.section .rodata,"a"')
    out.append('.p2align 6')
    out.append(f'.amdhsa_kernel {KNAME}')
    out.append(f'  .amdhsa_next_free_vgpr {NV}')
    out.append('  .amdhsa_next_free_sgpr 102')
    out.append(f'  .amdhsa_accum_offset {(NV+3)//4*4}')
    out.append('  .amdhsa_group_segment_fixed_size 0')
    out.append('  .amdhsa_kernarg_size 96')
    out.append('  .amdhsa_user_sgpr_count 2')
    out.append('  .amdhsa_user_sgpr_kernarg_segment_ptr 1')
    out.append('  .amdhsa_system_sgpr_workgroup_id_x 1')
    out.append('.end_amdhsa_kernel')
    return '\n'.join(out) + '\n'

if __name__ == '__main__':
    ap = argparse.ArgumentParser()
    ap.add_argument('-o', default='out.s')
    ap.add_argument('--ns', type=int, default=4)
    ap.add_argument('--ts', type=int, default=0)
    ap.add_argument('--strip', type=int, default=0)
    ap.add_argument('--nopro', action='store_true')
    ap.add_argument('--g', type=int, default=1)
    ap.add_argument('--nb', type=int, default=0)
    ap.add_argument('--light', type=int, default=1)
    ap.add_argument('--noq', action='store_true')
    ap.add_argument('--tlight', type=int, default=0)
    ap.add_argument('--latewait', type=int, default=1)
    ap.add_argument('--pt', action='store_true')
    ap.add_argument('--nbt', type=int, default=0)
    ap.add_argument('--norole', action='store_true')
    ap.add_argument('--nowo', action='store_true')
    ap.add_argument('--notail', action='store_true')
    ap.add_argument('--slp', type=int, default=4)
    ap.add_argument('--lds', type=int, default=0)
    ap.add_argument('--nv', type=int, default=0)
    a = ap.parse_args()
    cfg = Cfg(); cfg.NS = a.ns; cfg.TS = a.ts; cfg.STRIP = a.strip; cfg.NOPRO = a.nopro; cfg.G = a.g; cfg.NB = a.nb; cfg.NOQ = a.noq; cfg.TLIGHT = bool(a.tlight); cfg.LATEWAIT = bool(a.latewait); cfg.PT = a.pt; cfg.NBT = a.nbt; cfg.NOROLE = a.norole; cfg.NOWO = a.nowo; cfg.LIGHT = bool(a.light); cfg.SLP = a.slp; cfg.NOTAIL = a.nopro or a.notail; cfg.LDS = a.lds; cfg.NVF = a.nv
    open(a.o, 'w').write(build(cfg))
```

```python
import sys, struct, argparse
from emit import Emitter, hazard_pass

def f2u(x): return struct.unpack('<I', struct.pack('<f', x))[0]
def H(x): return hex(f2u(x))
KNAME = 'recurrent_scan__mha_block_cached__geglu_ffn__decode_kernel'

class Cfg:
    NS = 2; NBT = 6; TS = 0; SPIN = 40000; POL = 'nt'; WPOL = 'nt'
    NOPRO = False; NOTAIL = False; STRIP = 0
    WOLATE = True
    JIT = False
    SLP1 = 1; SLP2 = 1
    B0 = 32
    B1 = 8
    BSW = 3584
    SCHED = None
    WM = 16
    INIT = 32

WS_CNT = 0
WS_Q   = 32768
WS_F1  = WS_Q + 32*3072
WS_O   = WS_F1 + 48*1024
OSLOT  = 3200; OB = 800
WS_S   = WS_O + 256*OSLOT
WS_D   = WS_S + 32*10240
WS_TS  = WS_D + 3*10240
WS_TS2 = WS_TS + 2048*128
WS_USED = 4*1024*1024
WS_E = WS_USED - 256
L_W  = 0
L_W2 = 32768
L_WO = 81920
L_XN = 131072
XS = 1312; HS = 1056; OS = 416
L_Q  = L_XN + 4*XS
L_O  = L_Q + 1536
L_LT = L_O + 4*OS
L_QU = L_LT + 16
QN = 4608
L_END = L_QU + 4*QN
SLOT = 784
D_CLR = 48
KBYTES = 402653184
LOG2E = 1.4426950408889634
SCALE = 192 ** -0.5
NEG = -1.0e30

sWAVE='s3'; sH='s4'; sJ='s5'; sROLE='s6'; sSEL='s7'
K_SRD='s[8:11]'; V_SRD='s[12:15]'; WS_SRD='s[16:19]'; W_SRD='s[20:23]'
sSTRIDE='s24'; sWOFF='s25'; sOUT='s26'; sBSTR='s27'; sCS='s28'; sKR='s29'
sHBASE='s30'; sCURB='s31'; sOFF='s32'; sT0='s33'; sT1='s34'; sT2='s35'; sSPIN='s36'; sNST='s37'
sEX='s[38:39]'; sT3='s40'; sT4='s41'; sTAG0='s42'; sTAG1='s43'
pK=(46,47); pV=(48,49); pWQ=(50,51); pWO=(52,53); pWG=(56,57); pWU=(58,59); pWD=(60,61); pOUT=(62,63)
pDBG='s[64:65]'; pWS='s[66:67]'; sE0='s68'; sE1='s69'
def sTP(s): return f's{70+s}'
sGID='s74'; sCI='s28'
sTSB = 80
X_SRD='s[92:95]'
vLANE='v1'; vKV='v2'; vCNT='v3'; vONE='v4'
vLT='v5'; vTN='v6'; vTA='v7'
vFL='v14'; vQA='v15'
Q0=16; ACC=28; vM='v52'; vL='v53'; T0=54; RING=64

def gen(cfg):
    e = Emitter()
    NS = cfg.NS; NBT = cfg.NBT; POL = cfg.POL; WPOL = cfg.WPOL
    NV = max(RING + 24*(NS+NBT), 160)
    assert NV <= 256
    def kreg(s,i): return RING + s*24 + i*4
    def vreg(s,i): return RING + s*24 + 12 + i*4
    def t(i): return f'v{T0+i}'
    def stamp(k):
        if cfg.TS == 2 or (cfg.TS == 1 and k in (0, 10, 6)):
            e('s_memrealtime s[96:97]')
            e('s_waitcnt lgkmcnt(0)')
            e(f's_mov_b32 s{sTSB+k}, s96')
    def wave_red(v, tmp, op):
        for d in ('quad_perm:[1,0,3,2]','quad_perm:[2,3,0,1]','row_half_mirror','row_mirror'):
            e(f'{op}_dpp {v}, {v}, {v} {d} row_mask:0xf bank_mask:0xf')
        e(f'v_mov_b32 {tmp}, {v}')
        e(f'v_permlane16_swap_b32 {v}, {tmp}')
        e(f'{op} {v}, {v}, {tmp}')
        e(f'v_mov_b32 {tmp}, {v}')
        e(f'v_permlane32_swap_b32 {v}, {tmp}')
        e(f'{op} {v}, {v}, {tmp}')
    def rne(dst, src):
        e(f'v_cvt_pk_bf16_f32 {dst}, {src}, {src}')
        e(f'v_and_b32 {dst}, 0xffff0000, {dst}')
    def spin_tail(lbl, back, slp):
        e(f's_cbranch_vccz {lbl}_ok')
        e(f's_add_u32 {sSPIN}, {sSPIN}, 1')
        e(f's_cmp_lt_u32 {sSPIN}, {cfg.SPIN}')
        e(f's_cbranch_scc0 {lbl}_ok')
        e(f's_sleep {slp}')
        e(f's_branch {back}')
        e.label(f'{lbl}_ok')

    NSW = 7
    NSTAT = NS + NBT
    PTOFF = 8*NSW*NSTAT + 8*cfg.INIT
    NPRE = 6*(NS+NBT)
    SENTQ = 0xffffffff
    def tile_to_off(st):
        e(f's_lshr_b32 {sT1}, {st}, 10')
        e(f's_and_b32 {sT2}, {st}, 1023')
        e(f's_mul_i32 {sT1}, {sT1}, {32*8192*384}')
        e(f's_mul_i32 {sT2}, {sT2}, 3072')
        e(f's_add_u32 {sOFF}, {sT1}, {sT2}')
        e(f's_add_u32 {sOFF}, {sOFF}, {sHBASE}')
        e(f's_cmp_lt_u32 {st}, 4096')
        e(f's_cselect_b32 {sOFF}, {sOFF}, 0')
        e(f's_cselect_b32 s10, s10, 0')
        e(f's_cselect_b32 s14, s14, 0')
    def issueK(s):
        for i in range(3):
            b = kreg(s,i)
            e(f'buffer_load_dwordx4 v[{b}:{b+3}], {vKV}, {K_SRD}, {sOFF} offen offset:{i*128} {POL}')
    def issueV(s):
        for i in range(3):
            b = vreg(s,i)
            e(f'buffer_load_dwordx4 v[{b}:{b+3}], {vKV}, {V_SRD}, {sOFF} offen offset:{i*128} {POL}')
    def static_issue(slot, k):
        e(f's_add_u32 {sOFF}, {sGID}, {8*NSW*k}')
        e(f's_mul_i32 {sOFF}, {sOFF}, 3072')
        e(f's_add_u32 {sOFF}, {sOFF}, {sHBASE}')
        issueK(slot); issueV(slot)
    def kv_ring():
        for s in range(NS):
            static_issue(s, s)
    def kv_stash():
        for u in range(NBT): static_issue(NS+u, NS+u)
    def kv_prefetch():
        kv_ring(); kv_stash()

    e.label(KNAME)
    e('s_cmp_ge_u32 s2, 256')
    e('s_cbranch_scc1 L_END')
    e('s_load_dwordx16 s[44:59], s[0:1], 0')
    e('s_load_dwordx8 s[60:67], s[0:1], 64')
    stamp(0)
    e(f'v_and_b32 {vLANE}, 63, v0')
    e(f'v_lshrrev_b32 {t(0)}, 6, v0')
    e(f'v_readfirstlane_b32 {sWAVE}, {t(0)}')
    e(f's_lshr_b32 {sH}, s2, 3')
    e(f's_and_b32 {sJ}, s2, 7')
    e(f'v_lshrrev_b32 {t(0)}, 3, {vLANE}')
    e(f'v_mul_u32_u24 {vKV}, 384, {t(0)}')
    e(f'v_and_b32 {t(1)}, 7, {vLANE}')
    e(f'v_lshlrev_b32 {t(2)}, 4, {t(1)}')
    e(f'v_add_u32 {vKV}, {vKV}, {t(2)}')
    e(f'v_lshlrev_b32 {vFL}, 3, {t(1)}')
    e(f'v_add_u32 {vFL}, {vFL}, {t(0)}')
    e(f'v_lshlrev_b32 {vFL}, 2, {vFL}')
    e(f'v_add_u32 {vQA}, {L_Q}, {t(2)}')
    e(f'v_mov_b32 {vONE}, 1')
    e(f's_lshl_b32 {sT0}, {sH}, 10')
    e(f'v_mov_b32 {vCNT}, {sT0}')
    e(f's_mul_i32 {sHBASE}, {sH}, {8192*384}')
    e(f's_mul_i32 {sGID}, {sJ}, {NSW}')
    e(f's_add_u32 {sGID}, {sGID}, {sWAVE}')
    e(f'v_mov_b32 {vLT}, {L_LT}')
    e(f's_mov_b32 {sROLE}, 0'); e(f's_mov_b32 {sSEL}, 0')
    e(f's_mov_b32 {sSTRIDE}, 12288'); e(f's_mov_b32 {sWOFF}, 0'); e(f's_mov_b32 {sOUT}, 0'); e(f's_mov_b32 {sBSTR}, 0'); e(f's_mov_b32 {sKR}, 0')
    e(f's_cmp_lt_u32 {sJ}, 3')
    e('s_cbranch_scc1 L_roleA')
    e(f's_cmp_eq_u32 {sJ}, 3')
    e('s_cbranch_scc1 L_roleB3')
    e(f's_cmp_eq_u32 {sJ}, 4')
    e('s_cbranch_scc1 L_roleB4')
    e(f's_cmp_eq_u32 {sJ}, 7')
    e('s_cbranch_scc1 L_roledone')
    e(f's_cmp_lt_u32 {sH}, 16')
    e('s_cbranch_scc1 L_roledone')
    e(f's_sub_u32 {sT0}, {sH}, 16')
    e(f's_lshl_b32 {sT0}, {sT0}, 1')
    e(f's_add_u32 {sT0}, {sT0}, {sJ}')
    e(f's_sub_u32 {sT0}, {sT0}, 5')
    e(f's_cmp_ge_u32 {sT0}, 30')
    e('s_cbranch_scc1 L_roledone')
    e(f's_mov_b32 {sROLE}, 2'); e(f's_mov_b32 {sSEL}, 3')
    e(f's_cmp_ge_u32 {sT0}, 10'); e(f's_cselect_b32 {sKR}, 1, 0')
    e(f's_cmp_ge_u32 {sT0}, 20'); e(f's_cselect_b32 {sKR}, 2, {sKR}')
    e(f's_mul_i32 {sT1}, {sKR}, 10')
    e(f's_sub_u32 {sT0}, {sT0}, {sT1}')
    e(f's_mov_b32 {sSTRIDE}, 1280')
    e(f's_mul_i32 {sWOFF}, {sKR}, {512*1280}')
    e(f's_lshl_b32 {sT1}, {sT0}, 7')
    e(f's_add_u32 {sWOFF}, {sWOFF}, {sT1}')
    e(f's_mul_i32 {sOUT}, {sKR}, 10240')
    e(f's_lshl_b32 {sT1}, {sT0}, 8')
    e(f's_add_u32 {sOUT}, {sOUT}, {sT1}')
    e(f's_add_u32 {sOUT}, {sOUT}, {WS_D}')
    e(f's_mov_b32 {sBSTR}, 2560')
    e('s_branch L_roledone')
    e.label('L_roleA')
    e(f's_mov_b32 {sROLE}, 1')
    e(f's_mul_i32 {sWOFF}, {sH}, 384')
    e(f's_lshl_b32 {sT1}, {sJ}, 7')
    e(f's_add_u32 {sWOFF}, {sWOFF}, {sT1}')
    e(f's_mul_i32 {sOUT}, {sH}, 3072')
    e(f's_lshl_b32 {sT1}, {sJ}, 10')
    e(f's_add_u32 {sOUT}, {sOUT}, {sT1}')
    e(f's_add_u32 {sOUT}, {sOUT}, {WS_Q}')
    e('s_branch L_roledone')
    e.label('L_roleB4')
    e(f's_cmp_ge_u32 {sH}, 16')
    e('s_cbranch_scc1 L_roledone')
    e(f's_add_u32 {sT0}, {sH}, 32')
    e('s_branch L_roleB')
    e.label('L_roleB3')
    e(f's_mov_b32 {sT0}, {sH}')
    e.label('L_roleB')
    e(f's_mov_b32 {sROLE}, 1')
    e(f's_lshl_b32 {sOUT}, {sT0}, 10')
    e(f's_add_u32 {sOUT}, {sOUT}, {WS_F1}')
    e(f's_cmp_lt_u32 {sT0}, 24')
    e(f's_cselect_b32 {sSEL}, 1, 2')
    e(f's_cselect_b32 {sT1}, 0, 24')
    e(f's_sub_u32 {sT0}, {sT0}, {sT1}')
    e(f's_mov_b32 {sSTRIDE}, 3072')
    e(f's_lshl_b32 {sWOFF}, {sT0}, 7')
    e.label('L_roledone')
    e('s_waitcnt lgkmcnt(0)')
    e(f's_mov_b32 s8, s{pK[0]}');  e(f's_mov_b32 s9, s{pK[1]}');  e(f's_mov_b32 s10, {KBYTES}'); e('s_mov_b32 s11, 0x20000')
    e(f's_mov_b32 s12, s{pV[0]}'); e(f's_mov_b32 s13, s{pV[1]}'); e(f's_mov_b32 s14, {KBYTES}'); e('s_mov_b32 s15, 0x20000')
    e('s_mov_b32 s16, s66'); e('s_mov_b32 s17, s67'); e(f's_mov_b32 s18, {WS_USED}'); e('s_mov_b32 s19, 0x20000')
    e(f's_mov_b32 {sT0}, {WS_E}')
    e(f's_load_dwordx2 s[68:69], {pWS}, {sT0}')
    stamp(1)
    if cfg.NOPRO:
        e(f's_mov_b32 {sROLE}, 0')
        e(f's_cmp_eq_u32 {sWAVE}, 7')
        e('s_cbranch_scc1 L_w7init')
        kv_prefetch()
        e('s_branch L_pre_b3')
    e(f's_cmp_lt_u32 {sWAVE}, 4')
    e('s_cbranch_scc1 L_lo_waves')

    e(f'v_subrev_u32 v16, 256, v0')
    for i in range(4): e(f'v_mov_b32 v{20+i}, -1')
    e(f'v_lshlrev_b32 v17, 4, v16')
    e(f's_lshl_b32 {sT0}, {sH}, 3')
    e(f's_add_u32 {sT0}, {sT0}, {sJ}')
    e(f's_mul_i32 {sT0}, {sT0}, {OSLOT}')
    e(f's_add_u32 {sT0}, {sT0}, {WS_O}')
    e('v_cmp_gt_u32 vcc, 200, v16')
    e(f's_and_saveexec_b64 {sEX}, vcc')
    e('s_cbranch_execz L_clr1')
    e(f'buffer_store_dwordx4 v[20:23], v17, {WS_SRD}, {sT0} offen sc1')
    e.label('L_clr1')
    e(f's_mov_b64 exec, {sEX}')
    e(f's_cmp_lt_u32 {sJ}, 5')
    e('s_cbranch_scc0 L_clr2e')
    e(f's_mul_i32 {sT0}, {sH}, 10240')
    e(f's_lshl_b32 {sT1}, {sJ}, 9')
    e(f's_add_u32 {sT0}, {sT0}, {sT1}')
    e(f's_add_u32 {sT0}, {sT0}, {WS_S}')
    e('v_lshrrev_b32 v18, 5, v16')
    e('v_mul_u32_u24 v18, 2560, v18')
    e('v_and_b32 v19, 31, v16')
    e('v_lshlrev_b32 v19, 4, v19')
    e('v_add_u32 v18, v18, v19')
    e('v_cmp_gt_u32 vcc, 128, v16')
    e(f's_and_saveexec_b64 {sEX}, vcc')
    e('s_cbranch_execz L_clr2')
    e(f'buffer_store_dwordx4 v[20:23], v18, {WS_SRD}, {sT0} offen sc1')
    e.label('L_clr2')
    e(f's_mov_b64 exec, {sEX}')
    e.label('L_clr2e')
    def wo_dma_hi():
        e(f's_mov_b32 s20, s{pWO[0]}'); e(f's_mov_b32 s21, s{pWO[1]}'); e(f's_mov_b32 s22, {6144*1280}'); e('s_mov_b32 s23, 0x20000')
        e(f'v_lshrrev_b32 {t(2)}, 4, {vLANE}')
        e(f'v_and_b32 {t(1)}, 15, {vLANE}')
        e(f'v_lshlrev_b32 {t(3)}, 1, {t(2)}')
        e(f'v_xor_b32 {t(1)}, {t(1)}, {t(3)}')
        e(f'v_mul_u32_u24 {t(2)}, 1280, {t(2)}')
        e(f'v_xor_b32 {t(3)}, 8, {t(1)}')
        e(f'v_lshlrev_b32 {t(1)}, 4, {t(1)}')
        e(f'v_lshlrev_b32 {t(3)}, 4, {t(3)}')
        e(f'v_add_u32 {t(0)}, {t(2)}, {t(1)}')
        e(f'v_add_u32 {t(1)}, {t(2)}, {t(3)}')
        e(f's_sub_u32 {sT0}, {sWAVE}, 4')
        e(f's_mul_i32 {sT0}, {sT0}, 48')
        e(f's_mul_i32 {sT1}, {sH}, 192')
        e(f's_add_u32 {sT1}, {sT1}, {sT0}')
        e(f's_mul_i32 {sT1}, {sT1}, 1280')
        e(f's_lshl_b32 {sT2}, {sJ}, 8')
        e(f's_add_u32 {sT1}, {sT1}, {sT2}')
        e(f's_lshl_b32 {sT0}, {sT0}, 8')
        e(f's_add_u32 {sT0}, {sT0}, {L_WO}')
        for i in range(12):
            e(f's_mov_b32 m0, {sT0}')
            e(f'buffer_load_dwordx4 {t((i>>1)&1)}, {W_SRD}, {sT1} offen {WPOL} lds')
            if i < 11:
                e(f's_add_u32 {sT0}, {sT0}, 1024')
                e(f's_add_u32 {sT1}, {sT1}, {4*1280}')
    NWO = 0
    assert cfg.WOLATE
    e(f's_cmp_eq_u32 {sWAVE}, 7')
    e('s_cbranch_scc0 L_hi_stream')
    e.label('L_w7init')
    for i in range(4): e(f'v_mov_b32 v{20+i}, -1')
    e(f'v_lshlrev_b32 v16, 4, {vLANE}')
    e(f'v_add_u32 v16, {L_QU}, v16')
    for i in range(QN*4//1024):
        e(f'ds_write_b128 v16, v[20:23] offset:{i*1024}')
    e(f's_mul_i32 {sT0}, {sJ}, {cfg.INIT}')
    e(f's_add_u32 {sT0}, {sT0}, {8*NSW*NSTAT}')
    e(f'v_add_u32 v17, {sT0}, {vLANE}')
    e(f'v_lshlrev_b32 v18, 2, {vLANE}')
    e(f'v_add_u32 v18, {L_QU}, v18')
    e(f'v_cmp_gt_u32 vcc, {cfg.INIT}, {vLANE}')
    e(f's_and_saveexec_b64 {sEX}, vcc')
    e('ds_write_b32 v18, v17')
    e(f's_mov_b64 exec, {sEX}')
    e('v_mov_b32 v17, 0')
    e(f'ds_write_b32 {vLT}, v17')
    e('s_waitcnt lgkmcnt(0)')
    e(f's_cmp_eq_u32 {sROLE}, 1')
    e('s_cbranch_scc0 L_w7_nob1')
    e('s_barrier')
    e.label('L_w7_nob1')
    e('s_waitcnt vmcnt(0)')
    e('s_branch L_pre_b3')
    e.label('L_hi_stream')
    e(f's_cmp_eq_u32 {sROLE}, 1')
    e('s_cbranch_scc0 L_hi_r0')
    if cfg.WOLATE: kv_ring()
    else: wo_dma_hi()
    e('s_barrier')
    if cfg.WOLATE: kv_stash()
    else: kv_prefetch()
    e(f's_waitcnt vmcnt({NPRE+NWO})')
    e('s_branch L_pre_b3')
    e.label('L_hi_r0')
    kv_prefetch()
    if not cfg.WOLATE:
        e(f's_cmp_lt_u32 {sJ}, 5')
        e('s_cbranch_scc0 L_hi_nowo')
        wo_dma_hi()
        e(f's_waitcnt vmcnt({NPRE+NWO})')
        e('s_branch L_pre_b3')
        e.label('L_hi_nowo')
    e(f's_waitcnt vmcnt({NPRE})')
    e('s_branch L_pre_b3')

    e.label('L_lo_waves')
    e(f's_cmp_eq_u32 {sWAVE}, 0')
    e('s_cbranch_scc0 L_noprio')
    e('s_setprio 3')
    e(f's_cmp_eq_u32 {sJ}, 0')
    e('s_cbranch_scc0 L_noprio')
    e('v_mov_b32 v18, 0')
    e('s_mov_b64 exec, 1')
    e(f'global_store_dword {vCNT}, v18, {pWS} sc1')
    e('s_mov_b64 exec, -1')
    e.label('L_noprio')
    def w_srd():
        e(f's_mov_b32 s20, s{pWQ[0]}'); e(f's_mov_b32 s21, s{pWQ[1]}'); e(f's_mov_b32 s22, {640*12288}'); e('s_mov_b32 s23, 0x20000')
        for sel, p, sz in ((1,pWG,640*3072),(2,pWU,640*3072),(3,pWD,1536*1280)):
            e(f's_cmp_eq_u32 {sSEL}, {sel}')
            e(f's_cselect_b32 s20, s{p[0]}, s20'); e(f's_cselect_b32 s21, s{p[1]}, s21'); e(f's_cselect_b32 s22, {sz}, s22')
    def dma_rows(n, lds_base):
        e(f'v_lshrrev_b32 {t(0)}, 3, {vLANE}')
        e(f'v_mul_lo_u32 {t(2)}, {t(0)}, {sSTRIDE}')
        e(f'v_and_b32 {t(1)}, 7, {vLANE}')
        e(f'v_and_b32 {t(0)}, 2, {t(0)}')
        e(f'v_xor_b32 {t(1)}, {t(1)}, {t(0)}')
        e(f'v_xor_b32 {t(3)}, 4, {t(1)}')
        e(f'v_lshlrev_b32 {t(1)}, 4, {t(1)}')
        e(f'v_lshlrev_b32 {t(3)}, 4, {t(3)}')
        e(f'v_add_u32 {t(0)}, {t(2)}, {t(1)}')
        e(f'v_add_u32 {t(1)}, {t(2)}, {t(3)}')
        e(f's_mul_i32 {sT1}, {sT0}, {sSTRIDE}')
        e(f's_add_u32 {sT1}, {sT1}, {sWOFF}')
        e(f's_lshl_b32 {sT0}, {sT0}, 7')
        e(f's_add_u32 {sT0}, {sT0}, {lds_base}')
        e(f's_lshl_b32 {sT2}, {sSTRIDE}, 3')
        for i in range(n):
            e(f's_mov_b32 m0, {sT0}')
            e(f'buffer_load_dwordx4 {t(i & 1)}, {W_SRD}, {sT1} offen {WPOL} lds')
            if i < n-1:
                e(f's_add_u32 {sT0}, {sT0}, 1024')
                e(f's_add_u32 {sT1}, {sT1}, {sT2}')
    def make_tags():
        e(f's_add_u32 {sTAG0}, {sE0}, 1')
        e(f's_not_b32 {sTAG1}, {sE1}')
    e(f's_cmp_eq_u32 {sROLE}, 1')
    e('s_cbranch_scc0 L_lo_not1')
    e('s_mov_b32 s92, s44'); e('s_mov_b32 s93, s45'); e('s_mov_b32 s94, 5120'); e('s_mov_b32 s95, 0x20000')
    e(f's_mul_i32 {sT0}, {sWAVE}, 1280')
    e(f'v_lshlrev_b32 {t(8)}, 2, {vLANE}')
    X0 = 16
    for i in range(5):
        e(f'buffer_load_dword v{X0+i}, {t(8)}, {X_SRD}, {sT0} offen offset:{i*256}')
    w_srd()
    e(f's_mul_i32 {sT0}, {sWAVE}, 160')
    dma_rows(20, L_W)
    e('s_waitcnt vmcnt(20)')
    U0 = 24
    for i in range(5):
        e(f'v_lshlrev_b32 v{U0+2*i}, 16, v{X0+i}')
        e(f'v_and_b32 v{U0+2*i+1}, 0xffff0000, v{X0+i}')
    sm = 'v36'; tm = 'v37'; mean = 'v38'; var = 'v39'; den = 'v40'; rc = 'v41'
    e(f'v_add_f32 {sm}, v{U0}, v{U0+1}')
    for i in range(2,10): e(f'v_add_f32 {sm}, {sm}, v{U0+i}')
    wave_red(sm, tm, 'v_add_f32')
    e(f'v_mul_f32 {mean}, {H(1.0/640)}, {sm}')
    e(f'v_sub_f32 v42, v{U0}, {mean}')
    e(f'v_mul_f32 {var}, v42, v42')
    for i in range(1,10):
        e(f'v_sub_f32 v42, v{U0+i}, {mean}')
        e(f'v_fmac_f32 {var}, v42, v42')
    wave_red(var, tm, 'v_add_f32')
    e(f'v_mul_f32 {var}, {H(1.0/640)}, {var}')
    rne(mean, mean); rne(var, var)
    e(f'v_add_f32 {var}, {H(1e-5)}, {var}')
    rne(var, var)
    e(f'v_sqrt_f32 {den}, {var}')
    rne(den, den)
    e(f'v_rcp_f32 {rc}, {den}')
    e(f's_mul_i32 {sT0}, {sWAVE}, {XS}')
    e(f's_add_u32 {sT0}, {sT0}, {L_XN}')
    e(f'v_add_u32 {t(8)}, {sT0}, {t(8)}')
    for i in range(5):
        a = f'v{U0+2*i}'; b = f'v{U0+2*i+1}'
        e(f'v_sub_f32 {a}, {a}, {mean}')
        e(f'v_sub_f32 {b}, {b}, {mean}')
        e(f'v_cvt_pk_bf16_f32 v42, {a}, {b}')
        e(f'v_lshlrev_b32 {a}, 16, v42')
        e(f'v_and_b32 {b}, 0xffff0000, v42')
        for x in (a, b):
            e(f'v_mul_f32 v43, {x}, {rc}')
            e(f'v_fma_f32 v44, -v43, {den}, {x}')
            e(f'v_fma_f32 {x}, v44, {rc}, v43')
        e(f'v_cvt_pk_bf16_f32 v42, {a}, {b}')
        e(f'ds_write_b32 {t(8)}, v42 offset:{i*256}')
    stamp(11)
    vB='v16'; vB2='v17'; vA='v18'; D=20
    def frag_addr(ldsW, ldsX, rowbytes):
        e(f'v_lshrrev_b32 v24, 4, {vLANE}')
        e(f'v_and_b32 v25, 15, {vLANE}')
        e(f'v_lshrrev_b32 v26, 2, v25')
        e(f'v_and_b32 v27, 3, v25')
        e(f'v_lshlrev_b32 {vB}, 3, v24')
        e(f'v_add_u32 {vB}, {vB}, v26')
        e(f'v_lshlrev_b32 {vB}, 7, {vB}')
        e(f'v_lshlrev_b32 v27, 3, v27')
        e(f'v_add_u32 {vB}, {vB}, v27')
        e(f'v_add_u32 {vB}, {ldsW}, {vB}')
        e(f'v_lshrrev_b32 v26, 1, v26')
        e(f'v_and_b32 v19, 1, v24')
        e(f'v_lshlrev_b32 v19, 1, v19')
        e(f'v_or_b32 v19, v19, v26')
        e(f'v_and_b32 v26, 3, {vLANE}')
        e(f'v_mul_u32_u24 {vA}, {rowbytes}, v26')
        e(f'v_lshlrev_b32 v24, 4, v24')
        e(f'v_add_u32 {vA}, {vA}, v24')
        e(f'v_add_u32 {vA}, {ldsX}, {vA}')
    def frag_tile(dst, tile):
        e(f'v_xor_b32 v27, {tile}, v19')
        e(f'v_lshlrev_b32 v27, 5, v27')
        e(f'v_add_u32 {dst}, v27, {vB}')
    frag_addr(L_W, L_XN, XS)
    frag_tile(vB, sWAVE)
    e(f'v_add_u32 {vB2}, 0x10000, {vB}')
    for i in range(4): e(f'v_mov_b32 v{D+i}, 0')
    e('s_waitcnt vmcnt(0) lgkmcnt(0)')
    e('s_barrier')
    stamp(2)
    make_tags()
    RT = RING
    def rd(tt, r):
        base = vB if tt < 16 else vB2
        off = (tt % 16)*4096
        e(f'ds_read_b64_tr_b16 v[{r}:{r+1}], {base} offset:{off}')
        e(f'ds_read_b64_tr_b16 v[{r+2}:{r+3}], {base} offset:{off+512}')
        e(f'ds_read_b128 v[{r+4}:{r+7}], {vA} offset:{tt*64}')
    DEPTH = 5
    for tt in range(DEPTH): rd(tt, RT + tt*8)
    for tt in range(20):
        r = RT + (tt % 10)*8
        rem = min(DEPTH, 20-tt) - 1
        e(f's_waitcnt lgkmcnt({3*rem})')
        e(f'v_mfma_f32_16x16x32_bf16 v[{D}:{D+3}], v[{r+4}:{r+7}], v[{r}:{r+3}], v[{D}:{D+3}]')
        if tt + DEPTH < 20: rd(tt+DEPTH, RT + ((tt+DEPTH) % 10)*8)
    e(f'v_mov_b32 v26, {sTAG0}')
    e(f'v_mov_b32 v27, {sTAG1}')
    e(f'v_lshlrev_b32 v28, 4, {vLANE}')
    e(f's_lshl_b32 {sT0}, {sWAVE}, 8')
    e(f's_add_u32 {sT0}, {sT0}, {sOUT}')
    e(f'v_cvt_pk_bf16_f32 v24, v{D}, v{D+1}')
    e(f'v_cvt_pk_bf16_f32 v25, v{D+2}, v{D+3}')
    e('s_mov_b64 exec, 0xffff')
    e(f'buffer_store_dwordx4 v[24:27], v28, {WS_SRD}, {sT0} offen sc1')
    e('s_mov_b64 exec, -1')
    stamp(3)
    e(f's_cmp_eq_u32 {sWAVE}, 0')
    e('s_cbranch_scc1 L_w0_q')
    e('s_branch L_lo_pref')

    e.label('L_lo_not1')
    e(f's_cmp_eq_u32 {sWAVE}, 0')
    e('s_cbranch_scc1 L_w0_q')
    e(f's_cmp_eq_u32 {sROLE}, 2')
    e('s_cbranch_scc0 L_lo_pref')
    e(f's_cmp_eq_u32 {sWAVE}, 1')
    e('s_cbranch_scc0 L_lo_pref')
    e('v_mov_b32 v20, -1')
    e(f'v_lshlrev_b32 v16, 2, {vLANE}')
    e(f's_mov_b32 {sT0}, {sOUT}')
    for b in range(4):
        e(f'buffer_store_dword v20, v16, {WS_SRD}, {sT0} offen sc1')
        if b < 3: e(f's_add_u32 {sT0}, {sT0}, 2560')
    w_srd()
    e(f's_mov_b32 {sT0}, 0')
    dma_rows(64, L_W2)
    e('s_branch L_pre_b3')
    e.label('L_lo_pref')
    kv_prefetch()
    e('s_branch L_pre_b3')

    e.label('L_w0_q')
    e('s_waitcnt lgkmcnt(0)')
    make_tags()
    e(f'v_lshlrev_b32 v16, 4, {vLANE}')
    e(f's_mul_i32 {sT0}, {sH}, 3072')
    e(f's_add_u32 {sT0}, {sT0}, {WS_Q}')
    e(f's_mov_b32 {sSPIN}, 0')
    e.label('L_qpoll')
    for i in range(3):
        e(f'buffer_load_dwordx4 v[{20+4*i}:{23+4*i}], v16, {WS_SRD}, {sT0} offen offset:{i*1024} sc1')
    e('s_waitcnt vmcnt(0)')
    e(f'v_xor_b32 v32, {sTAG0}, v22')
    e(f'v_xor_b32 v33, {sTAG1}, v23')
    e('v_or_b32 v32, v32, v33')
    for i in range(1,3):
        e(f'v_xor_b32 v33, {sTAG0}, v{22+4*i}')
        e('v_or_b32 v32, v32, v33')
        e(f'v_xor_b32 v33, {sTAG1}, v{23+4*i}')
        e('v_or_b32 v32, v32, v33')
    e('v_cmp_ne_u32 vcc, 0, v32')
    spin_tail('L_qpoll', 'L_qpoll', 1)
    stamp(4)
    e(f'v_lshlrev_b32 v17, 1, {vLANE}')
    e(f'v_add_u32 v17, {L_Q}, v17')
    for i in range(3):
        e(f'ds_write_b16 v17, v{20+4*i} offset:{i*128}')
        e(f'ds_write_b16_d16_hi v17, v{20+4*i} offset:{i*128+384}')
        e(f'ds_write_b16 v17, v{21+4*i} offset:{i*128+768}')
        e(f'ds_write_b16_d16_hi v17, v{21+4*i} offset:{i*128+1152}')
    e('s_waitcnt lgkmcnt(0)')
    e('s_barrier')
    e('s_setprio 0')
    kv_prefetch()
    e('s_branch L_post_b3')

    e.label('L_pre_b3')
    e('s_barrier')
    e.label('L_post_b3')
    stamp(5)
    e(f's_cmp_eq_u32 {sWAVE}, 4')
    e('s_cbranch_scc0 L_noclr')
    e(f'v_mov_b32 {t(8)}, {4*D_CLR}')
    e('s_mov_b64 exec, 1')
    e(f'global_atomic_add {t(8)}, {vONE}, {pDBG}')
    e('s_mov_b64 exec, -1')
    e.label('L_noclr')
    if cfg.NOPRO: e('s_branch L_noffn2')
    e(f's_cmp_eq_u32 {sROLE}, 2')
    e('s_cbranch_scc0 L_noffn2')
    e(f's_cmp_eq_u32 {sWAVE}, 1')
    e('s_cbranch_scc0 L_noffn2')
    e('s_waitcnt vmcnt(0) lgkmcnt(0)')
    make_tags()
    e(f'v_lshlrev_b32 v16, 4, {vLANE}')
    e(f's_lshl_b32 {sT0}, {sKR}, 13')
    e(f's_add_u32 {sT0}, {sT0}, {WS_F1}')
    e(f's_mov_b32 {sSPIN}, 0')
    G0 = RING; U0_ = RING + 32
    e.label('L_f1poll')
    e(f's_mov_b32 {sT1}, {sT0}')
    for i in range(8):
        e(f'buffer_load_dwordx4 v[{G0+4*i}:{G0+4*i+3}], v16, {WS_SRD}, {sT1} offen sc1')
        e(f's_add_u32 {sT2}, {sT1}, {24*1024}')
        e(f'buffer_load_dwordx4 v[{U0_+4*i}:{U0_+4*i+3}], v16, {WS_SRD}, {sT2} offen sc1')
        if i < 7: e(f's_add_u32 {sT1}, {sT1}, 1024')
    e('s_waitcnt vmcnt(0)')
    e('v_mov_b32 v32, 0')
    for i in range(16):
        r = G0 + 4*i
        e(f'v_xor_b32 v33, {sTAG0}, v{r+2}')
        e('v_or_b32 v32, v32, v33')
        e(f'v_xor_b32 v33, {sTAG1}, v{r+3}')
        e('v_or_b32 v32, v32, v33')
    e('v_cmp_ne_u32 vcc, 0, v32')
    spin_tail('L_f1poll', 'L_f1poll', 16)
    KB_ = 0.7978845608028654; KK = 0.044715
    e(f's_mov_b32 {sT3}, {H(KK)}')
    e(f's_mov_b32 {sT4}, {H(-2.0*KB_*LOG2E)}')
    e(f'v_lshlrev_b32 v17, 1, {vLANE}')
    e(f'v_add_u32 v17, {L_XN}, v17')
    for i in range(8):
        for b in range(4):
            gs = f'v{G0+4*i+(b>>1)}'; us = f'v{U0_+4*i+(b>>1)}'
            if b & 1:
                e(f'v_and_b32 v20, 0xffff0000, {gs}'); e(f'v_and_b32 v21, 0xffff0000, {us}')
            else:
                e(f'v_lshlrev_b32 v20, 16, {gs}'); e(f'v_lshlrev_b32 v21, 16, {us}')
            g = 'v20'; u = 'v21'
            e(f'v_mul_f32 v36, {g}, {g}')
            e(f'v_mul_f32 v36, v36, {g}')
            e(f'v_fma_f32 v36, v36, {sT3}, {g}')
            e(f'v_mul_f32 v36, {sT4}, v36')
            e(f'v_exp_f32 v36, v36')
            e(f'v_add_f32 v36, 1.0, v36')
            e(f'v_rcp_f32 v37, v36')
            e(f'v_mul_f32 v40, {g}, v37')
            e(f'v_fma_f32 v39, -v40, v36, {g}')
            e(f'v_fma_f32 v38, v39, v37, v40')
            e(f'v_cmp_o_f32 vcc, v38, v38')
            e(f'v_cndmask_b32 v38, v40, v38, vcc')
            rne('v38', 'v38')
            e(f'v_mul_f32 v38, v38, {u}')
            e(f'v_cvt_pk_bf16_f32 v38, v38, v38')
            e(f'ds_write_b16 v17, v38 offset:{b*HS + i*128}')
    e('s_waitcnt lgkmcnt(0)')
    frag_addr(L_W2, L_XN, HS)
    for tl in range(4): frag_tile(f'v{40+tl}', tl)
    for half in range(2):
        for k in range(8):
            tt = half*8+k
            e(f'ds_read_b128 v[{RING+4*tt}:{RING+4*tt+3}], {vA} offset:{tt*64}')
        e('s_waitcnt lgkmcnt(0)')
    for i in range(16): e(f'v_mov_b32 v{20+i}, 0')
    BR = RING + 64
    for tile_ in range(4):
        for grp in range(4):
            for k in range(4):
                tt = grp*4+k
                r = BR + k*4
                e(f'ds_read_b64_tr_b16 v[{r}:{r+1}], v{40+tile_} offset:{tt*4096}')
                e(f'ds_read_b64_tr_b16 v[{r+2}:{r+3}], v{40+tile_} offset:{tt*4096 + 512}')
            for k in range(4):
                tt = grp*4+k
                r = BR + k*4
                e(f's_waitcnt lgkmcnt({2*(3-k)})')
                e(f'v_mfma_f32_16x16x32_bf16 v[{20+4*tile_}:{23+4*tile_}], v[{RING+4*tt}:{RING+4*tt+3}], v[{r}:{r+3}], v[{20+4*tile_}:{23+4*tile_}]')
    e(f'v_lshlrev_b32 v16, 2, {vLANE}')
    e('s_mov_b64 exec, 0xffff')
    for b in range(4):
        e(f's_mul_i32 {sT0}, {sBSTR}, {b}')
        e(f's_add_u32 {sT0}, {sT0}, {sOUT}')
        for tile_ in range(4):
            e(f'buffer_store_dword v{20+4*tile_+b}, v16, {WS_SRD}, {sT0} offen offset:{tile_*64} sc1')
    e('s_mov_b64 exec, -1')
    kv_prefetch()
    e.label('L_noffn2')

    e(f's_mul_i32 {sT0}, {sWAVE}, {4*SLOT}')
    e(f's_add_u32 {sT0}, {sT0}, {L_W}')
    e(f'v_lshlrev_b32 {t(0)}, 4, {vLANE}')
    e(f'v_add_u32 {t(0)}, {sT0}, {t(0)}')
    for i in range(4): e(f'v_mov_b32 {t(4+i)}, 0')
    pair = f'v[{T0+4}:{T0+7}]'
    for i in range(3): e(f'ds_write_b128 {t(0)}, {pair} offset:{i*1024}')
    e('s_mov_b64 exec, 0xf')
    e(f'ds_write_b128 {t(0)}, {pair} offset:3072')
    e(f'v_mul_u32_u24 {t(1)}, {SLOT}, {vLANE}')
    e(f'v_add_u32 {t(1)}, {sT0}, {t(1)}')
    e(f'v_mov_b32 {t(2)}, {H(NEG)}')
    e(f'ds_write_b32 {t(1)}, {t(2)} offset:768')
    e('s_mov_b64 exec, -1')
    def load_q():
        e(f's_mul_i32 {sT0}, {sCURB}, 384')
        e(f'v_add_u32 {t(0)}, {sT0}, {vQA}')
        for i in range(3):
            e(f'ds_read_b128 v[{Q0+4*i}:{Q0+4*i+3}], {t(0)} offset:{i*128}')
    def reset_state():
        for i in range(24): e(f'v_mov_b32 v{ACC+i}, 0')
        e(f'v_mov_b32 {vM}, {H(NEG)}')
        e(f'v_mov_b32 {vL}, 0')
    e(f's_mov_b32 {sCURB}, 0')
    if cfg.TS:
        e(f's_mov_b32 {sNST}, 0')
        e('s_mov_b32 s76, 0'); e('s_mov_b32 s77, 0'); e('s_mov_b32 s78, 0')
        e('s_memtime s[98:99]')
        e('s_waitcnt lgkmcnt(0)')
        e('s_mov_b32 s79, s98')
    load_q()
    reset_state()
    e(f's_mov_b32 {sT3}, {H(SCALE)}')
    e(f's_mov_b32 {sT4}, {H(LOG2E)}')
    e('s_waitcnt lgkmcnt(0)')

    def flush():
        M = t(0); tmp = t(1); sc = t(2); Ls = t(3)
        e(f'v_mov_b32 {M}, {vM}')
        e(f'v_max_f32_dpp {M}, {M}, {M} row_ror:8 row_mask:0xf bank_mask:0xf')
        e(f'v_mov_b32 {tmp}, {M}')
        e(f'v_permlane16_swap_b32 {M}, {tmp}')
        e(f'v_max_f32 {M}, {M}, {tmp}')
        e(f'v_mov_b32 {tmp}, {M}')
        e(f'v_permlane32_swap_b32 {M}, {tmp}')
        e(f'v_max_f32 {M}, {M}, {tmp}')
        e(f'v_sub_f32 {sc}, {vM}, {M}')
        e(f'v_mul_f32 {sc}, {sT4}, {sc}')
        e(f'v_exp_f32 {sc}, {sc}')
        e(f'v_mul_f32 {Ls}, {vL}, {sc}')
        for i in range(24): e(f'v_mul_f32 v{ACC+i}, v{ACC+i}, {sc}')
        e(f'v_add_f32_dpp {Ls}, {Ls}, {Ls} row_ror:8 row_mask:0xf bank_mask:0xf')
        e(f'v_mov_b32 {tmp}, {Ls}')
        e(f'v_permlane16_swap_b32 {Ls}, {tmp}')
        e(f'v_add_f32 {Ls}, {Ls}, {tmp}')
        e(f'v_mov_b32 {tmp}, {Ls}')
        e(f'v_permlane32_swap_b32 {Ls}, {tmp}')
        e(f'v_add_f32 {Ls}, {Ls}, {tmp}')
        A = lambda i, x: f'v{ACC+i*8+x}'
        for i in range(3):
            for x in range(4): e(f'v_permlane32_swap_b32 {A(i,x)}, {A(i,x+4)}')
        for i in range(3):
            for x in range(4): e(f'v_add_f32 {A(i,x)}, {A(i,x)}, {A(i,x+4)}')
        for i in range(3):
            for x in range(2): e(f'v_permlane16_swap_b32 {A(i,x)}, {A(i,x+2)}')
        for i in range(3):
            for x in range(2): e(f'v_add_f32 {A(i,x)}, {A(i,x)}, {A(i,x+2)}')
        for i in range(3):
            e(f'v_add_f32_dpp {A(i,0)}, {A(i,0)}, {A(i,0)} row_ror:8 row_mask:0xf bank_mask:0x3')
        for i in range(3):
            e(f'v_add_f32_dpp {A(i,0)}, {A(i,1)}, {A(i,1)} row_ror:8 row_mask:0xf bank_mask:0xc')
        e(f's_lshl_b32 {sT0}, {sWAVE}, 2')
        e(f's_add_u32 {sT0}, {sT0}, {sCURB}')
        e(f's_mul_i32 {sT0}, {sT0}, {SLOT}')
        e(f's_add_u32 {sT0}, {sT0}, {L_W}')
        e(f'v_add_u32 {tmp}, {sT0}, {vFL}')
        for i in range(3): e(f'ds_write_b32 {tmp}, {A(i,0)} offset:{i*256}')
        e(f'v_mov_b32 {tmp}, {sT0}')
        e(f'v_mov_b32 {t(4)}, {M}')
        e(f'v_mov_b32 {t(5)}, {Ls}')
        e('s_mov_b64 exec, 1')
        e(f'ds_write_b64 {tmp}, v[{T0+4}:{T0+5}] offset:768')
        e('s_mov_b64 exec, -1')

    outofline = []
    def tile(s, NK, NVw, refill, tag):
        k = lambda i: f'v{kreg(s,0)+i}'
        q = lambda i: f'v{Q0+i}'
        d0, d1, d2 = t(0), t(1), t(2)
        if refill:
            e('s_mov_b64 exec, 1')
            e(f'ds_add_rtn_u32 {vTN}, {vLT}, {vONE}')
            e('s_mov_b64 exec, -1')
        e(f's_waitcnt vmcnt({NK})')
        e(f'v_dot2_f32_bf16 {d0}, {k(0)}, {q(0)}, 0')
        e(f'v_dot2_f32_bf16 {d1}, {k(4)}, {q(4)}, 0')
        e(f'v_dot2_f32_bf16 {d2}, {k(8)}, {q(8)}, 0')
        if refill:
            e('s_waitcnt lgkmcnt(0)')
            e(f'v_readfirstlane_b32 {sT0}, {vTN}')
            e(f's_lshl_b32 {sT0}, {sT0}, 2')
            e(f's_add_u32 {sT0}, {sT0}, {L_QU}')
            e(f'v_mov_b32 {vTA}, {sT0}')
            e(f'ds_read_b32 {vTN}, {vTA}')
        else: e('s_nop 0')
        for w in range(1,4):
            e(f'v_dot2c_f32_bf16 {d0}, {k(w)}, {q(w)}')
            e(f'v_dot2c_f32_bf16 {d1}, {k(4+w)}, {q(4+w)}')
            e(f'v_dot2c_f32_bf16 {d2}, {k(8+w)}, {q(8+w)}')
        if refill:
            e('s_waitcnt lgkmcnt(0)')
            e(f'v_readfirstlane_b32 {sTP(s)}, {vTN}')
            e(f's_cmp_eq_u32 {sTP(s)}, -1')
            e(f's_cbranch_scc1 L_tw{tag}')
            e.label(f'L_twret{tag}')
            tile_to_off(sTP(s))
            issueK(s)
            def fw():
                e.label(f'L_tw{tag}')
                e(f's_mov_b32 {sSPIN}, 0')
                e.label(f'L_twl{tag}')
                e('s_sleep 1')
                e(f'ds_read_b32 {vTN}, {vTA}')
                e('s_waitcnt lgkmcnt(0)')
                e(f'v_readfirstlane_b32 {sTP(s)}, {vTN}')
                e(f's_cmp_lg_u32 {sTP(s)}, -1')
                e(f's_cbranch_scc1 L_twret{tag}')
                e(f's_add_u32 {sSPIN}, {sSPIN}, 1')
                e(f's_cmp_lt_u32 {sSPIN}, {cfg.SPIN*2}')
                e(f's_cbranch_scc1 L_twl{tag}')
                e(f's_mov_b32 {sTP(s)}, 0x7fffffff')
                e(f's_branch L_twret{tag}')
            outofline.append(fw)
        e(f'v_add_f32 {d0}, {d0}, {d1}')
        e(f'v_add_f32 {d0}, {d0}, {d2}')
        for d in ('quad_perm:[1,0,3,2]','quad_perm:[2,3,0,1]','row_half_mirror'):
            e(f'v_add_f32_dpp {d0}, {d0}, {d0} {d} row_mask:0xf bank_mask:0xf')
        rne(d0, d0)
        e(f'v_mul_f32 {d0}, {sT3}, {d0}')
        rne(d0, d0)
        e(f'v_cmp_gt_f32 vcc, {d0}, {vM}')
        e(f's_cbranch_vccnz L_rs{tag}')
        e.label(f'L_rsret{tag}')
        e(f'v_sub_f32 {d1}, {d0}, {vM}')
        e(f'v_mul_f32 {d1}, {sT4}, {d1}')
        e(f'v_exp_f32 {d1}, {d1}')
        e(f'v_add_f32 {vL}, {vL}, {d1}')
        e(f'v_cvt_pk_bf16_f32 {t(3)}, {d1}, 0')
        e(f'v_cvt_pk_bf16_f32 {t(4)}, 0, {d1}')
        e(f's_waitcnt vmcnt({NVw})')
        for i in range(3):
            for w in range(4):
                vv = f'v{vreg(s,i)+w}'
                e(f'v_dot2c_f32_bf16 v{ACC+i*8+2*w}, {vv}, {t(3)}')
                e(f'v_dot2c_f32_bf16 v{ACC+i*8+2*w+1}, {vv}, {t(4)}')
        if refill: issueV(s)
        def f():
            e.label(f'L_rs{tag}')
            e(f'v_max_f32 {t(1)}, {vM}, {t(0)}')
            e(f'v_sub_f32 {t(2)}, {vM}, {t(1)}')
            e(f'v_mul_f32 {t(2)}, {sT4}, {t(2)}')
            e(f'v_exp_f32 {t(2)}, {t(2)}')
            e(f'v_mov_b32 {vM}, {t(1)}')
            e(f'v_mul_f32 {vL}, {vL}, {t(2)}')
            for i in range(24): e(f'v_mul_f32 v{ACC+i}, v{ACC+i}, {t(2)}')
            e(f's_branch L_rsret{tag}')
        outofline.append(f)
    def ts_log():
        if cfg.TS == 2:
            e('s_memrealtime s[96:97]')
            e('s_waitcnt lgkmcnt(0)')
            e(f's_add_u32 {sT0}, s75, s73')
            e(f'v_mov_b32 {t(0)}, {sT0}')
            e(f'v_mov_b32 {t(1)}, s96')
            e(f'ds_write_b32 {t(0)}, {t(1)}')
            e('s_add_u32 s73, s73, 4')
            e('s_min_u32 s73, s73, 252')
            e(f's_add_u32 {sNST}, {sNST}, {NS}')
    if cfg.TS == 2:
        e(f's_lshl_b32 {sT0}, {sWAVE}, 8')
        e(f's_add_u32 s75, {sT0}, {L_END}')
        e(f'v_lshlrev_b32 {t(0)}, 2, {vLANE}')
        e(f'v_add_u32 {t(0)}, s75, {t(0)}')
        e(f'v_mov_b32 {t(1)}, 0')
        e(f'ds_write_b32 {t(0)}, {t(1)}')
        e('s_mov_b32 s73, 0')
    e(f's_cmp_eq_u32 {sWAVE}, 7')
    e('s_cbranch_scc1 L_srv0')
    ops = []
    for s_ in range(NS): ops += [('K',s_)]*3 + [('V',s_)]*3
    for u in range(NBT): ops += [('SK',u)]*3 + [('SV',u)]*3
    def after_(lst, key):
        last = max(i for i,o in enumerate(lst) if o == key)
        return len(lst) - 1 - last
    for s_ in range(NS):
        nk = after_(ops, ('K',s_))
        ops2 = ops + [('Kn',s_)]*3
        nv = after_(ops2, ('V',s_))
        tile(s_, nk, nv, True, f'i{s_}')
        ops = ops2 + [('Vn',s_)]*3
    for u in range(NBT):
        tile(NS+u, after_(ops, ('SK',u)), after_(ops, ('SV',u)), False, f's{u}')
    e.label('L_loop')
    N1 = 3 + 6*(NS-1); N2 = 6*(NS-1) + 3
    for s_ in range(NS):
        e(f's_cmp_ge_u32 {sTP(s_)}, 4096')
        e('s_cbranch_scc1 L_exit')
        e(f's_lshr_b32 {sT0}, {sTP(s_)}, 10')
        e(f's_cmp_lg_u32 {sT0}, {sCURB}')
        e(f's_cbranch_scc1 L_sw{s_}')
        e.label(f'L_swret{s_}')
        tile(s_, N1, N2, True, f'm{s_}')
        def mkp(s_):
            def f():
                e.label(f'L_sw{s_}')
                flush()
                e(f's_lshr_b32 {sCURB}, {sTP(s_)}, 10')
                if cfg.TS == 2:
                    e('s_memrealtime s[96:97]')
                    e('s_waitcnt lgkmcnt(0)')
                    e(f's_cmp_eq_u32 {sCURB}, 1'); e('s_cselect_b32 s76, s96, s76')
                    e(f's_cmp_eq_u32 {sCURB}, 2'); e('s_cselect_b32 s77, s96, s77')
                    e(f's_cmp_eq_u32 {sCURB}, 3'); e('s_cselect_b32 s78, s96, s78')
                load_q()
                reset_state()
                e('s_waitcnt lgkmcnt(0)')
                e(f's_branch L_swret{s_}')
            return f
        outofline.append(mkp(s_))
    ts_log()
    e('s_branch L_loop')
    for f in outofline: f()

    sFILL = 's70'; sPOS = 's71'; sN = 's72'; sB = 's73' if cfg.TS != 2 else 's72'
    e.label('L_srv0')
    e('s_setprio 3')
    e(f's_mov_b32 {sFILL}, {cfg.INIT}')
    e(f's_mov_b32 {sPOS}, {PTOFF}')
    e(f's_mov_b32 {sSPIN}, 0')
    e.label('L_srv')
    e(f'ds_read_b32 {t(0)}, {vLT}')
    e('s_waitcnt lgkmcnt(0)')
    e(f'v_readfirstlane_b32 {sT0}, {t(0)}')
    e(f's_sub_u32 {sT0}, {sFILL}, {sT0}')
    e(f's_cmp_lt_i32 {sT0}, {cfg.WM}')
    e('s_cbranch_scc1 L_srv_get')
    e(f's_add_u32 {sSPIN}, {sSPIN}, 1')
    e(f's_cmp_lt_u32 {sSPIN}, {cfg.SPIN*8}')
    e('s_cbranch_scc0 L_srv_fin')
    e('s_sleep 2')
    e('s_branch L_srv')
    e.label('L_srv_get')
    sched = cfg.SCHED or [(cfg.BSW, cfg.B0), (4096, cfg.B1)]
    e(f's_mov_b32 {sT2}, {sched[0][1]}')
    for (th, _), (_, sz) in zip(sched[:-1], sched[1:]):
        e(f's_cmp_ge_u32 {sPOS}, {th}')
        e(f's_cselect_b32 {sT2}, {sz}, {sT2}')
    e(f'v_mov_b32 {t(1)}, {sT2}')
    e('s_mov_b64 exec, 1')
    e(f'global_atomic_add {t(2)}, {vCNT}, {t(1)}, {pWS} sc0')
    e('s_mov_b64 exec, -1')
    e(f's_lshl_b32 {sT1}, {sFILL}, 2')
    e(f's_add_u32 {sT1}, {sT1}, {L_QU}')
    e(f'v_lshlrev_b32 {t(3)}, 2, {vLANE}')
    e(f'v_add_u32 {t(3)}, {sT1}, {t(3)}')
    e('s_waitcnt vmcnt(0)')
    e(f'v_readfirstlane_b32 {sT0}, {t(2)}')
    e(f's_add_u32 {sT0}, {sT0}, {PTOFF}')
    e(f'v_add_u32 {t(4)}, {sT0}, {vLANE}')
    maxb = max(sz for _, sz in sched)
    for i in range((maxb + 63)//64):
        if i > 0:
            e(f'v_add_u32 {t(4)}, 64, {t(4)}')
        e(f'v_add_u32 {t(5)}, {64*i}, {vLANE}')
        e(f'v_cmp_gt_u32 vcc, {sT2}, {t(5)}')
        e(f's_and_saveexec_b64 {sEX}, vcc')
        e(f's_cbranch_execz L_srvw{i}')
        e(f'ds_write_b32 {t(3)}, {t(4)} offset:{256*i}')
        e.label(f'L_srvw{i}')
        e(f's_mov_b64 exec, {sEX}')
    e(f's_add_u32 {sFILL}, {sFILL}, {sT2}')
    e(f's_add_u32 {sPOS}, {sT0}, {sT2}')
    e(f's_cmp_lt_u32 {sPOS}, 4096')
    e('s_cbranch_scc1 L_srv')
    e.label('L_srv_fin')
    e(f's_lshl_b32 {sT1}, {sFILL}, 2')
    e(f's_add_u32 {sT1}, {sT1}, {L_QU}')
    e(f'v_lshlrev_b32 {t(3)}, 2, {vLANE}')
    e(f'v_add_u32 {t(3)}, {sT1}, {t(3)}')
    e(f'v_mov_b32 {t(4)}, 0x7fffffff')
    e(f'ds_write_b32 {t(3)}, {t(4)}')
    e('s_setprio 0')
    e.label('L_exit')
    stamp(6)
    if cfg.TS:
        e('s_memtime s[98:99]')
        e('s_waitcnt lgkmcnt(0)')
        e('s_sub_u32 s79, s98, s79')
    e(f'v_mov_b32 {t(8)}, {4*D_CLR}')
    e(f'global_load_dword {t(9)}, {t(8)}, {pDBG} sc1')
    if cfg.WOLATE:
        e(f's_cmp_lt_u32 {sJ}, 5')
        e('s_cbranch_scc0 L_nowo')
        e(f's_mov_b32 s20, s{pWO[0]}'); e(f's_mov_b32 s21, s{pWO[1]}'); e(f's_mov_b32 s22, {6144*1280}'); e('s_mov_b32 s23, 0x20000')
        e(f'v_lshrrev_b32 {t(2)}, 4, {vLANE}')
        e(f'v_and_b32 {t(1)}, 15, {vLANE}')
        e(f'v_lshlrev_b32 {t(3)}, 1, {t(2)}')
        e(f'v_xor_b32 {t(1)}, {t(1)}, {t(3)}')
        e(f's_and_b32 {sT0}, {sWAVE}, 1')
        e(f's_lshl_b32 {sT0}, {sT0}, 3')
        e(f'v_xor_b32 {t(1)}, {sT0}, {t(1)}')
        e(f'v_mul_u32_u24 {t(2)}, 1280, {t(2)}')
        e(f'v_xor_b32 {t(3)}, 8, {t(1)}')
        e(f'v_lshlrev_b32 {t(1)}, 4, {t(1)}')
        e(f'v_lshlrev_b32 {t(3)}, 4, {t(3)}')
        e(f'v_add_u32 {t(6)}, {t(2)}, {t(1)}')
        e(f'v_add_u32 {t(7)}, {t(2)}, {t(3)}')
        e(f's_mul_i32 {sT0}, {sWAVE}, 24')
        e(f's_mul_i32 {sT1}, {sH}, 192')
        e(f's_add_u32 {sT1}, {sT1}, {sT0}')
        e(f's_mul_i32 {sT1}, {sT1}, 1280')
        e(f's_lshl_b32 {sT2}, {sJ}, 8')
        e(f's_add_u32 {sT1}, {sT1}, {sT2}')
        e(f's_lshl_b32 {sT0}, {sT0}, 8')
        e(f's_add_u32 {sT0}, {sT0}, {L_WO}')
        for i in range(6):
            e(f's_mov_b32 m0, {sT0}')
            e(f'buffer_load_dwordx4 {t(6 + ((i>>1)&1))}, {W_SRD}, {sT1} offen {WPOL} lds')
            if i < 5:
                e(f's_add_u32 {sT0}, {sT0}, 1024')
                e(f's_add_u32 {sT1}, {sT1}, {4*1280}')
        flush()
        e('s_waitcnt lgkmcnt(0)')
        e('s_barrier')
        e('s_waitcnt vmcnt(6)')
        e('s_branch L_b4done')
        e.label('L_nowo')
    flush()
    e('s_waitcnt lgkmcnt(0)')
    e('s_barrier')
    e('s_waitcnt vmcnt(0)')
    e.label('L_b4done')
    stamp(7)
    if cfg.NOTAIL: e('s_branch L_END2')
    def b_preload():
        e(f'v_lshrrev_b32 v24, 4, {vLANE}')
        e(f'v_and_b32 v25, 15, {vLANE}')
        e(f'v_lshrrev_b32 v26, 2, v25')
        e(f'v_and_b32 v27, 3, v25')
        e(f'v_lshlrev_b32 v48, 3, v24')
        e(f'v_add_u32 v48, v48, v26')
        e(f'v_lshlrev_b32 v48, 8, v48')
        e(f'v_lshlrev_b32 v27, 3, v27')
        e(f'v_add_u32 v48, v48, v27')
        e(f'v_and_b32 v24, 1, v24')
        e(f'v_lshlrev_b32 v24, 2, v24')
        e(f'v_or_b32 v24, v24, v26')
        e(f'v_xor_b32 v24, {sWAVE}, v24')
        e(f'v_lshlrev_b32 v24, 5, v24')
        e(f'v_add_u32 v48, v48, v24')
        e(f'v_add_u32 v48, {L_WO}, v48')
    def b_read():
        for k in range(6):
            e(f'ds_read_b64_tr_b16 v[{64+4*k}:{65+4*k}], v48 offset:{k*8192}')
            e(f'ds_read_b64_tr_b16 v[{66+4*k}:{67+4*k}], v48 offset:{k*8192+1024}')
    e(f's_cmp_lt_u32 {sJ}, 5')
    e('s_cbranch_scc0 L_nopre')
    b_preload()
    if not cfg.WOLATE: b_read()
    e.label('L_nopre')
    e(f's_cmp_ge_u32 {sWAVE}, 3')
    e('s_cbranch_scc1 L_tail_hi')
    e(f'v_mul_u32_u24 v16, 1366, v0')
    e(f'v_lshrrev_b32 v16, 16, v16')
    e(f'v_mul_u32_u24 v17, 48, v16')
    e(f'v_sub_u32 v17, v0, v17')
    e(f'v_mul_u32_u24 v18, {SLOT}, v16')
    e(f'v_add_u32 v18, {L_W}, v18')
    e(f'v_lshlrev_b32 v19, 4, v17')
    e(f'v_add_u32 v19, v18, v19')
    if not cfg.WOLATE: e('s_waitcnt lgkmcnt(0)')
    for w in range(6):
        e(f'ds_read_b64 v[{20+2*w}:{21+2*w}], v18 offset:{w*4*SLOT+768}')
    for w in range(6,8):
        e(f'ds_read_b64 v[{20+2*w}:{21+2*w}], v18 offset:{w*4*SLOT+768}')
    for w in range(7):
        e(f'ds_read_b128 v[{96+4*w}:{99+4*w}], v19 offset:{w*4*SLOT}')
    e('s_waitcnt lgkmcnt(7)')
    e(f'ds_read_b128 v[{96+28}:{99+28}], v19 offset:{7*4*SLOT}')
    def combine(after_exp=None):
        e('v_max3_f32 v36, v20, v22, v24')
        e('v_max3_f32 v36, v36, v26, v28')
        e('v_max3_f32 v36, v36, v30, v32')
        e('v_max_f32 v36, v36, v34')
        for w in range(8):
            e(f'v_sub_f32 v{20+2*w}, v{20+2*w}, v36')
        for w in range(8):
            e(f'v_mul_f32 v{20+2*w}, {sT4}, v{20+2*w}')
        for w in range(8):
            e(f'v_exp_f32 v{20+2*w}, v{20+2*w}')
        e('v_mul_f32 v37, v20, v21')
        for w in range(1,8): e(f'v_fmac_f32 v37, v{20+2*w}, v{21+2*w}')
        if after_exp: e(after_exp)
        for x in range(4): e(f'v_mul_f32 v{40+x}, v20, v{96+x}')
        for w in range(1,8):
            for x in range(4): e(f'v_fmac_f32 v{40+x}, v{20+2*w}, v{96+4*w+x}')
    combine('s_waitcnt lgkmcnt(0)')
    e(f's_lshl_b32 {sT0}, {sH}, 3')
    e(f's_add_u32 {sT0}, {sT0}, {sJ}')
    e(f's_mul_i32 {sT0}, {sT0}, {OSLOT}')
    e(f's_add_u32 {sT0}, {sT0}, {WS_O}')
    e(f'v_mul_u32_u24 v18, {OB}, v16')
    e(f'v_lshlrev_b32 v19, 4, v17')
    e(f'v_add_u32 v19, v18, v19')
    e(f'buffer_store_dwordx4 v[40:43], v19, {WS_SRD}, {sT0} offen sc1')
    e('v_mov_b32 v38, 0'); e('v_mov_b32 v39, 0')
    e('v_cmp_eq_u32 vcc, 0, v17')
    e(f's_and_saveexec_b64 {sEX}, vcc')
    e('s_cbranch_execz L_noml')
    e(f'buffer_store_dwordx4 v[36:39], v18, {WS_SRD}, {sT0} offen offset:768 sc1')
    e.label('L_noml')
    e(f's_mov_b64 exec, {sEX}')
    stamp(8)
    e(f's_cmp_lt_u32 {sJ}, 5')
    e('s_cbranch_scc0 L_END2')
    def cleared_check(lbl):
        e(f'v_readfirstlane_b32 {sT0}, {t(9)}')
        e(f's_cmp_eq_u32 {sT0}, 256')
        e(f's_cbranch_scc1 {lbl}_ok')
        e(f's_mov_b32 {sSPIN}, 0')
        e(f'v_mov_b32 {t(8)}, {4*D_CLR}')
        e.label(lbl)
        e(f'global_load_dword {t(9)}, {t(8)}, {pDBG} sc1')
        e('s_waitcnt vmcnt(0)')
        e(f'v_cmp_ne_u32 vcc, 0x100, {t(9)}')
        spin_tail(lbl, lbl, 2)
    cleared_check('L_clrA')
    e(f's_mul_i32 {sT0}, {sH}, {8*OSLOT}')
    e(f's_add_u32 {sT0}, {sT0}, {WS_O}')
    e(f's_mov_b32 {sSPIN}, 0')
    e.label('L_g1')
    e(f's_mov_b32 {sT1}, {sT0}')
    for w in range(8):
        e(f'buffer_load_dwordx4 v[{96+4*w}:{99+4*w}], v19, {WS_SRD}, {sT1} offen sc1')
        e(f'buffer_load_dwordx2 v[{20+2*w}:{21+2*w}], v18, {WS_SRD}, {sT1} offen offset:768 sc1')
        if w < 7: e(f's_add_u32 {sT1}, {sT1}, {OSLOT}')
    e('s_waitcnt vmcnt(0)')
    e('v_max3_u32 v36, v96, v97, v98')
    for r in range(99,127,2): e(f'v_max3_u32 v36, v36, v{r}, v{r+1}')
    e('v_max_u32 v36, v36, v127')
    for r in range(20,36,2): e(f'v_max3_u32 v36, v36, v{r}, v{r+1}')
    e('v_cmp_eq_u32 vcc, -1, v36')
    spin_tail('L_g1', 'L_g1', cfg.SLP1)
    stamp(9)
    combine()
    e('v_rcp_f32 v38, v37')
    for x in range(4):
        e(f'v_mul_f32 v44, v{40+x}, v38')
        e(f'v_fma_f32 v45, -v44, v37, v{40+x}')
        e(f'v_fma_f32 v{40+x}, v45, v38, v44')
    e('v_cvt_pk_bf16_f32 v44, v40, v41')
    e('v_cvt_pk_bf16_f32 v45, v42, v43')
    e(f'v_mul_u32_u24 v18, {OS}, v16')
    e('v_lshlrev_b32 v19, 3, v17')
    e('v_add_u32 v18, v18, v19')
    e(f'v_add_u32 v18, {L_O}, v18')
    e('ds_write_b64 v18, v[44:45]')
    e('s_waitcnt lgkmcnt(0)')
    e('s_branch L_b5')
    e.label('L_tail_hi')
    e(f's_cmp_lt_u32 {sJ}, 5')
    e('s_cbranch_scc1 L_b5w')
    e(f's_cmp_eq_u32 {sWAVE}, 3')
    e('s_cbranch_scc0 L_END2')
    e(f's_cmp_eq_u32 {sJ}, 7')
    e('s_cbranch_scc1 L_END2')
    e(f's_sub_u32 {sT0}, {sJ}, 5')
    e(f's_lshl_b32 {sT0}, {sT0}, 5')
    e(f's_add_u32 {sT0}, {sT0}, {sH}')
    e(f's_cmp_ge_u32 {sT0}, 40')
    e('s_cbranch_scc1 L_END2')
    e(f's_mul_i32 {sT1}, {sT0}, 205')
    e(f's_lshr_b32 {sT1}, {sT1}, 11')
    e(f's_mul_i32 {sT2}, {sT1}, 10')
    e(f's_sub_u32 {sT2}, {sT0}, {sT2}')
    e(f's_mov_b32 {sKR}, {sT1}')
    e(f's_mov_b32 {sCS}, {sT2}')
    cleared_check('L_clrB')
    e('s_mov_b32 s92, s44'); e('s_mov_b32 s93, s45'); e('s_mov_b32 s94, 5120'); e('s_mov_b32 s95, 0x20000')
    e(f's_mul_i32 {sT0}, {sKR}, 1280')
    e(f's_lshl_b32 {sT1}, {sCS}, 7')
    e(f's_add_u32 {sOUT}, {sT0}, {sT1}')
    e(f'v_lshlrev_b32 v16, 1, {vLANE}')
    e(f'buffer_load_ushort v17, v16, {X_SRD}, {sOUT} offen')
    e(f'v_lshlrev_b32 v18, 2, {vLANE}')
    e(f's_mul_i32 {sT0}, {sKR}, 2560')
    e(f's_lshl_b32 {sT1}, {sCS}, 8')
    e(f's_add_u32 {sBSTR}, {sT0}, {sT1}')
    e(f's_mov_b32 {sSPIN}, 0')
    e.label('L_gd')
    e(f's_add_u32 {sT1}, {sBSTR}, {WS_D}')
    for kr in range(3):
        e(f'buffer_load_dword v{96+kr}, v18, {WS_SRD}, {sT1} offen sc1')
        if kr < 2: e(f's_add_u32 {sT1}, {sT1}, 10240')
    e('s_waitcnt vmcnt(0)')
    e('v_max3_u32 v36, v96, v97, v98')
    e('v_cmp_eq_u32 vcc, -1, v36')
    spin_tail('L_gd', 'L_gd', 2)
    e('v_add_f32 v96, v96, v97'); e('v_add_f32 v96, v96, v98')
    rne('v96','v96')
    e(f'v_mul_f32 v20, {H(-LOG2E)}, v96')
    e('v_exp_f32 v20, v20')
    e('v_add_f32 v20, 1.0, v20')
    e('v_rcp_f32 v21, v20')
    e('v_mul_f32 v22, v96, v21')
    e('v_fma_f32 v23, -v22, v20, v96')
    e('v_fma_f32 v23, v23, v21, v22')
    e('v_cmp_o_f32 vcc, v23, v23')
    e('v_cndmask_b32 v22, v22, v23, vcc')
    rne('v22','v22')
    e('v_lshlrev_b32 v17, 16, v17')
    e(f's_mov_b32 s92, s{pOUT[0]}'); e(f's_mov_b32 s93, s{pOUT[1]}'); e('s_mov_b32 s94, 5120'); e('s_mov_b32 s95, 0x20000')
    e(f's_mov_b32 {sSPIN}, 0')
    e.label('L_g2')
    e(f's_add_u32 {sT1}, {sBSTR}, {WS_S}')
    for hh in range(32):
        e(f'buffer_load_dword v{64+hh}, v18, {WS_SRD}, {sT1} offen sc1')
        if hh < 31: e(f's_add_u32 {sT1}, {sT1}, 10240')
    e('s_waitcnt vmcnt(0)')
    e('v_max3_u32 v36, v64, v65, v66')
    for r in range(67,95,2): e(f'v_max3_u32 v36, v36, v{r}, v{r+1}')
    e('v_max_u32 v36, v36, v95')
    e('v_cmp_eq_u32 vcc, -1, v36')
    spin_tail('L_g2', 'L_g2', cfg.SLP2)
    stamp(9)
    for r in range(0,32,2): e(f'v_add_f32 v{64+r}, v{64+r}, v{65+r}')
    for r in range(0,32,4): e(f'v_add_f32 v{64+r}, v{64+r}, v{66+r}')
    for r in range(0,32,8): e(f'v_add_f32 v{64+r}, v{64+r}, v{68+r}')
    e('v_add_f32 v64, v64, v72'); e('v_add_f32 v80, v80, v88'); e('v_add_f32 v64, v64, v80')
    rne('v64','v64')
    e('v_mul_f32 v22, v64, v22')
    rne('v22','v22')
    e('v_add_f32 v22, v17, v22')
    e('v_cvt_pk_bf16_f32 v22, v22, v22')
    e(f'buffer_store_short v22, v16, {X_SRD}, {sOUT} offen')
    e(f's_cmp_eq_u32 {sH}, 0')
    e('s_cbranch_scc0 L_END2')
    e(f's_cmp_eq_u32 {sJ}, 5')
    e('s_cbranch_scc0 L_END2')
    e(f's_add_u32 {sT0}, {sE0}, 1')
    e(f's_add_u32 {sT1}, {sE1}, 0x9e3779b9')
    e(f'v_mov_b32 v20, {sT0}')
    e(f'v_mov_b32 v21, {sT1}')
    e(f'v_mov_b32 v22, {WS_E}')
    e('s_mov_b64 exec, 1')
    e(f'global_store_dwordx2 v22, v[20:21], {pWS} sc1')
    e('s_mov_b64 exec, -1')
    e('s_branch L_END2')

    e.label('L_b5w')
    e('s_waitcnt vmcnt(0) lgkmcnt(0)')
    e.label('L_b5')
    e('s_barrier')
    e(f'v_and_b32 v16, 3, {vLANE}')
    e(f'v_mul_u32_u24 v16, {OS}, v16')
    e(f'v_lshrrev_b32 v17, 4, {vLANE}')
    e('v_lshlrev_b32 v17, 4, v17')
    e('v_add_u32 v16, v16, v17')
    e(f'v_add_u32 v16, {L_O}, v16')
    if cfg.WOLATE:
        for k in range(5):
            e(f'ds_read_b64_tr_b16 v[{64+4*k}:{65+4*k}], v48 offset:{k*8192}')
            e(f'ds_read_b64_tr_b16 v[{66+4*k}:{67+4*k}], v48 offset:{k*8192+1024}')
            e(f'ds_read_b128 v[{96+4*k}:{99+4*k}], v16 offset:{k*64}')
        for i in range(4): e(f'v_mov_b32 v{20+i}, 0')
        for k in range(6):
            if k == 1:
                pass
            n = 3*(4-k) if k < 5 else 0
            if k == 0:
                e(f's_waitcnt lgkmcnt(12)')
                e(f'v_mfma_f32_16x16x32_bf16 v[20:23], v[96:99], v[64:67], v[20:23]')
                e(f'ds_read_b64_tr_b16 v[84:85], v48 offset:{5*8192}')
                e(f'ds_read_b64_tr_b16 v[86:87], v48 offset:{5*8192+1024}')
                e(f'ds_read_b128 v[116:119], v16 offset:{5*64}')
            else:
                e(f's_waitcnt lgkmcnt({3*(5-k)})')
                e(f'v_mfma_f32_16x16x32_bf16 v[20:23], v[{96+4*k}:{99+4*k}], v[{64+4*k}:{67+4*k}], v[20:23]')
    else:
        for k in range(6):
            e(f'ds_read_b128 v[{96+4*k}:{99+4*k}], v16 offset:{k*64}')
        for i in range(4): e(f'v_mov_b32 v{20+i}, 0')
        for k in range(6):
            e(f's_waitcnt lgkmcnt({5-k})')
            e(f'v_mfma_f32_16x16x32_bf16 v[20:23], v[{96+4*k}:{99+4*k}], v[{64+4*k}:{67+4*k}], v[20:23]')
    e(f's_mul_i32 {sT0}, {sH}, 10240')
    e(f's_lshl_b32 {sT1}, {sJ}, 9')
    e(f's_add_u32 {sT0}, {sT0}, {sT1}')
    e(f's_lshl_b32 {sT1}, {sWAVE}, 6')
    e(f's_add_u32 {sT0}, {sT0}, {sT1}')
    e(f's_add_u32 {sT0}, {sT0}, {WS_S}')
    e(f'v_lshlrev_b32 v24, 2, {vLANE}')
    e('s_mov_b64 exec, 0xffff')
    for i in range(4):
        e(f'buffer_store_dword v{20+i}, v24, {WS_SRD}, {sT0} offen sc1')
        if i < 3: e(f's_add_u32 {sT0}, {sT0}, 2560')
    e('s_mov_b64 exec, -1')
    e.label('L_END2')
    if cfg.TS:
        stamp(10)
        e(f's_lshl_b32 {sT0}, s2, 3')
        e(f's_add_u32 {sT0}, {sT0}, {sWAVE}')
        e(f's_lshl_b32 {sT0}, {sT0}, 7')
        e(f's_add_u32 {sT0}, {sT0}, {WS_TS}')
        if cfg.TS == 2:
            e(f'v_lshlrev_b32 v16, 2, {vLANE}')
            e(f'v_add_u32 v17, s75, v16')
            e('ds_read_b32 v18, v17')
            e(f's_lshl_b32 {sT1}, {sT0}, 1')
            e(f's_sub_u32 {sT1}, {sT1}, {WS_TS}')
            e(f's_sub_u32 {sT1}, {sT1}, {WS_TS}')
            e(f's_add_u32 {sT1}, {sT1}, {WS_TS2}')
            e('s_waitcnt lgkmcnt(0)')
            e(f'buffer_store_dword v18, v16, {WS_SRD}, {sT1} offen')
        e('s_mov_b64 exec, 1')
        e('v_mov_b32 v16, 0')
        e(f'v_mov_b32 v24, {sNST}')
        e('v_mov_b32 v25, s79')
        e(f'buffer_store_dwordx2 v[24:25], v16, {WS_SRD}, {sT0} offen offset:48')
        e('v_mov_b32 v28, s76'); e('v_mov_b32 v29, s77'); e('v_mov_b32 v30, s78'); e('v_mov_b32 v31, 0')
        e(f'buffer_store_dwordx4 v[28:31], v16, {WS_SRD}, {sT0} offen offset:64')
        for k in range(0,12,4):
            for x in range(4): e(f'v_mov_b32 v{20+x}, s{sTSB+k+x}')
            e(f'buffer_store_dwordx4 v[20:23], v16, {WS_SRD}, {sT0} offen offset:{k*4}')
            e('s_nop 2')
    e('s_waitcnt vmcnt(0)')
    e.label('L_END')
    e('s_endpgm')
    body = hazard_pass([l for l in e.lines if l])
    return body, NV

HEADER = open('recurrent_scan__mha_block_cached__geglu_ffn__decode.s.ref').read().split('; Override launch geometry')[0]

def build(cfg):
    body, NV = gen(cfg)
    out = [HEADER.rstrip('\n')]
    out.append('; Override launch geometry by editing the next line (default: block=256,')
    out.append(f'; @launch grid=(256,1,1) block=(512,1,1) lds={L_END + (2048 if cfg.TS else 0)}')
    out.append('.amdgcn_target "amdgcn-amd-amdhsa--gfx950"')
    out.append('.text')
    out.append(f'.globl {KNAME}')
    out.append('.p2align 8')
    out.append(f'.type {KNAME},@function')
    for l in body:
        out.append(l if l.endswith(':') else '    ' + l)
    out.append('.section .rodata,"a"')
    out.append('.p2align 6')
    out.append(f'.amdhsa_kernel {KNAME}')
    out.append(f'  .amdhsa_next_free_vgpr {NV}')
    out.append('  .amdhsa_next_free_sgpr 102')
    out.append(f'  .amdhsa_accum_offset {(NV+3)//4*4}')
    out.append('  .amdhsa_group_segment_fixed_size 0')
    out.append('  .amdhsa_kernarg_size 96')
    out.append('  .amdhsa_user_sgpr_count 2')
    out.append('  .amdhsa_user_sgpr_kernarg_segment_ptr 1')
    out.append('  .amdhsa_system_sgpr_workgroup_id_x 1')
    out.append('.end_amdhsa_kernel')
    return '\n'.join(out) + '\n'

if __name__ == '__main__':
    ap = argparse.ArgumentParser()
    ap.add_argument('-o', default='out.s')
    ap.add_argument('--ns', type=int, default=2)
    ap.add_argument('--nbt', type=int, default=6)
    ap.add_argument('--ts', type=int, default=0)
    ap.add_argument('--nopro', action='store_true')
    ap.add_argument('--notail', action='store_true')
    ap.add_argument('--wolate', type=int, default=1)
    ap.add_argument('--slp1', type=int, default=1)
    ap.add_argument('--b0', type=int, default=32)
    ap.add_argument('--b1', type=int, default=8)
    ap.add_argument('--bsw', type=int, default=3584)
    ap.add_argument('--wm', type=int, default=16)
    ap.add_argument('--sched', default='')
    ap.add_argument('--init', type=int, default=32)
    ap.add_argument('--slp2', type=int, default=1)
    a = ap.parse_args()
    cfg = Cfg(); cfg.NS = a.ns; cfg.NBT = a.nbt; cfg.TS = a.ts; cfg.NOPRO = a.nopro; cfg.NOTAIL = a.nopro or a.notail
    cfg.WOLATE = bool(a.wolate); cfg.SLP1 = a.slp1; cfg.B0 = a.b0; cfg.B1 = a.b1; cfg.BSW = a.bsw; cfg.WM = a.wm; cfg.SLP2 = a.slp2
    if a.sched: cfg.SCHED = [tuple(int(x) for x in p.split(':')) for p in a.sched.split(',')]
    cfg.INIT = a.init
    assert cfg.INIT <= 64
    open(a.o, 'w').write(build(cfg))
```
